```python
import torch

def _softmax(x, axis=-1):
    return torch.softmax(x, dim=axis)
def _gelu(x):
    return torch.nn.functional.gelu(x, approximate="tanh")
def _silu(x):
    return torch.nn.functional.silu(x)
def _sigmoid(x):
    return torch.sigmoid(x)
def _layernorm(x, axis=-1, eps=1e-5):
    m = x.mean(dim=axis, keepdim=True)
    v = x.var(dim=axis, keepdim=True, unbiased=False)
    return (x - m) / torch.sqrt(v + eps)
def _scatter_add(tgt, idx, src, axis=0):
    return tgt.clone().index_add_(axis, idx, src)
def _segment_sum(src, seg, n):
    out = torch.zeros((n,) + src.shape[1:], dtype=src.dtype)
    return out.index_add_(0, seg, src)
def _pad(x, pw):
    flat = tuple(v for pair in reversed(pw) for v in pair)
    return torch.nn.functional.pad(x, flat)

kernel_name = 'standalone__glu_gated_swiglu__prompt'

def setup_inputs():

    _w = (lambda a: (lambda t: t.to(torch.bfloat16) if t.is_floating_point() else t)(torch.as_tensor(a)))
    B, S, D, F = 1, 2048, 1024, 3584
    return {
        "x": _w((lambda *s: torch.randn(*s, dtype=torch.bfloat16) * 0.05)(B, S, D)),
        "w1": _w((lambda *s: torch.randn(*s, dtype=torch.bfloat16) * 0.05)(D, F) * (2.0 / D) ** 0.5),
        "w3": _w((lambda *s: torch.randn(*s, dtype=torch.bfloat16) * 0.05)(D, F) * (2.0 / D) ** 0.5),
        "w2": _w((lambda *s: torch.randn(*s, dtype=torch.bfloat16) * 0.05)(F, D) * (2.0 / F) ** 0.5),
    }

def reference(x, w1, w3, w2):
    gate = torch.einsum("bsd,df->bsf", x, w1)
    up = torch.einsum("bsd,df->bsf", x, w3)
    h = _silu(gate) * up
    out = torch.einsum("bsf,fd->bsd", h, w2)
    return out
```

```python
import sys

class Asm:
    def __init__(self):
        self.lines = []
    def __call__(self, s):
        self.lines.append("    " + s)
    def label(self, s):
        self.lines.append(s + ":")
    def raw(self, s):
        self.lines.append(s)
    def text(self):
        return "\n".join(self.lines) + "\n"

def interleave(A, mfmas, gaps):
    for ins in gaps.get(-1, []):
        A(ins)
    for i, m in enumerate(mfmas):
        A(m)
        for ins in gaps.get(i, []):
            A(ins)

def spread(items, first, per_gap, gaps):
    g = first
    for i in range(0, len(items), per_gap):
        gaps.setdefault(g, []).extend(items[i:i+per_gap])
        g += 1

X_BYTES = 2048*1024*2
W_BYTES = 1024*3584*2
H_MB_STRIDE = 224*1024
H_BYTES = 64*H_MB_STRIDE
UP_OFF = 14336+128
WSLOT = UP_OFF+14336
WBASE = 65536
LDS1 = WBASE + 3*WSLOT

def kernel_up(A, opt):
    for c in range(448):
        assert (c*4682) >> 16 == c//14
    VOW = 224
    VOX = 231
    VXR = 239
    VWL = 243
    VWR = 244
    VH = 245
    T0, T1, T2, T3, T4, T5 = 246, 247, 248, 249, 250, 251
    WSET = [0, 28]
    XSET = [56, 64, 72, 80]
    sWAVE, sKX, sKW, sMX, sMW, sR, sN, sF, sCNT, sT, sWOFF, sXW = 32, 33, 34, 35, 36, 37, 38, 39, 40, 41, 42, 43
    sC0, sC1 = 44, 46
    name = "glu_up_kernel"
    A.raw(".text")
    A.raw(f".globl {name}")
    A.raw(".p2align 8")
    A.raw(f".type {name},@function")
    A.label(name)
    A("s_cmp_ge_u32 s2, 256")
    A("s_cbranch_scc1 L1_end")
    A("s_load_dwordx4 s[4:7], s[0:1], 0")
    A("s_load_dwordx2 s[8:9], s[0:1], 16")
    A("s_load_dwordx2 s[16:17], s[0:1], 48")
    A(f"v_lshrrev_b32 v{T0}, 6, v0")
    A(f"v_and_b32 v{T1}, 63, v0")
    A("s_and_b32 s3, s2, 7")
    A(f"v_readfirstlane_b32 s{sWAVE}, v{T0}")
    A("s_lshr_b32 s48, s2, 3")
    A("s_and_b32 s49, s3, 1")
    A("s_lshl_b32 s49, s49, 2")
    A("s_and_b32 s50, s48, 3")
    A("s_add_u32 s49, s49, s50")
    A("s_lshr_b32 s50, s3, 1")
    A("s_lshl_b32 s50, s50, 3")
    A("s_lshr_b32 s51, s48, 2")
    A("s_add_u32 s50, s50, s51")
    A(f"v_lshrrev_b32 v{T2}, 3, v{T1}")
    A(f"v_and_b32 v{T3}, 7, v{T1}")
    A(f"v_lshrrev_b32 v{T4}, 1, v{T2}")
    A(f"v_xor_b32 v{T3}, v{T3}, v{T4}")
    A(f"v_lshlrev_b32 v{T3}, 4, v{T3}")
    A(f"v_lshl_add_u32 v{T3}, v{T2}, 11, v{T3}")
    A("s_lshl_b32 s51, s49, 2")
    A(f"s_add_u32 s51, s51, s{sWAVE}")
    A("s_lshl_b32 s52, s51, 17")
    A(f"v_add_u32 v{T3}, s52, v{T3}")
    A(f"v_xor_b32 v{T4}, 64, v{T3}")
    for i in range(8):
        src = T4 if (i & 1) else T3
        c = i*16384 - (i & 3)*1024
        A(f"v_add_u32 v{VOX+i}, {c}, v{src}")
    A(f"s_and_b32 s52, s{sWAVE}, 1")
    A("s_mul_i32 s53, s52, 229376")
    A("s_mul_i32 s54, s50, 224")
    A(f"s_add_u32 s{sWOFF}, s53, s54")
    A(f"v_lshlrev_b32 v{T2}, 4, v{T1}")
    A(f"v_add_u32 v{T2}, s{sWOFF}, v{T2}")
    A("s_movk_i32 s55, 6944")
    for i in range(7):
        A(f"v_add_u32 v{T3}, {64*i}, v{T1}")
        A(f"v_mul_u32_u24 v{T3}, 4682, v{T3}")
        A(f"v_lshrrev_b32 v{T3}, 16, v{T3}")
        A(f"v_mad_u32_u24 v{VOW+i}, v{T3}, s55, v{T2}")
        c = 1024*i - (i & 3)*1024
        if c:
            A(f"v_add_u32 v{VOW+i}, {c}, v{VOW+i}")
    A(f"s_lshl_b32 s{sXW}, s{sWAVE}, 13")
    A(f"s_lshr_b32 s53, s{sWAVE}, 1")
    A(f"s_mul_i32 s53, s53, {UP_OFF}")
    A("s_mul_i32 s54, s52, 7168")
    A("s_add_u32 s56, s53, s54")
    A(f"s_add_u32 s56, s56, {WBASE}")
    A("s_waitcnt lgkmcnt(0)")
    A("s_mov_b32 s20, s4")
    A("s_and_b32 s21, s5, 0xffff")
    A(f"s_mov_b32 s22, {X_BYTES}")
    A("s_mov_b32 s23, 0x00020000")
    A(f"s_cmp_ge_u32 s{sWAVE}, 2")
    A("s_cselect_b32 s24, s8, s6")
    A("s_cselect_b32 s25, s9, s7")
    A("s_and_b32 s25, s25, 0xffff")
    A(f"s_mov_b32 s26, {W_BYTES}")
    A("s_mov_b32 s27, 0x00020000")

    def dma_w(i):
        return f"buffer_load_dwordx4 v{VOW+i}, s[24:27], s{sKW} offen offset:{(i&3)*1024} lds"
    def dma_x(i):
        return f"buffer_load_dwordx4 v{VOX+i}, s[20:23], s{sKX} offen offset:{(i&3)*1024} lds"

    for st in range(2):
        A(f"s_mov_b32 s{sKW}, {st*64*7168}")
        A(f"s_mov_b32 s{sKX}, {st*128}")
        A(f"s_add_u32 m0, s56, {st*WSLOT}")
        A("s_nop 0")
        for i in range(4): A(dma_w(i))
        A(f"s_add_u32 m0, s56, {st*WSLOT+4096}")
        A("s_nop 0")
        for i in range(4, 7): A(dma_w(i))
        A(f"s_add_u32 m0, s{sXW}, {st*32768}")
        A("s_nop 0")
        for i in range(4): A(dma_x(i))
        A(f"s_add_u32 m0, s{sXW}, {st*32768+4096}")
        A("s_nop 0")
        for i in range(4, 8): A(dma_x(i))
    A(f"v_and_b32 v{T2}, 31, v{T1}")
    A(f"v_lshrrev_b32 v{T3}, 5, v{T1}")
    A(f"v_bfe_u32 v{T4}, v{T1}, 1, 3")
    A(f"v_xor_b32 v{T4}, v{T4}, v{T3}")
    A(f"v_lshlrev_b32 v{T4}, 4, v{T4}")
    A(f"v_lshl_add_u32 v{T4}, v{T2}, 7, v{T4}")
    A(f"v_add_u32 v{VXR}, s{sXW}, v{T4}")
    for ks in range(1, 4):
        A(f"v_xor_b32 v{VXR+ks}, {32*ks}, v{VXR}")
    A(f"v_bfe_u32 v{T2}, v{T1}, 4, 1")
    A(f"v_mul_u32_u24 v{VWL}, {UP_OFF}, v{T2}")
    A(f"v_bfe_u32 v{T2}, v{T1}, 2, 2")
    A(f"v_lshl_add_u32 v{T2}, v{T3}, 3, v{T2}")
    A(f"v_mul_u32_u24 v{T2}, 224, v{T2}")
    A(f"v_add_u32 v{VWL}, v{VWL}, v{T2}")
    A(f"v_and_b32 v{T2}, 3, v{T1}")
    A(f"v_lshl_add_u32 v{VWL}, v{T2}, 3, v{VWL}")
    A(f"v_add_u32 v{VWR}, {WBASE}, v{VWL}")
    A("s_lshl_b32 s52, s51, 1")
    A(f"s_mul_i32 s52, s52, {H_MB_STRIDE}")
    A("s_mul_i32 s53, s50, 7168")
    A("s_add_u32 s52, s52, s53")
    A(f"v_lshlrev_b32 v{VH}, 4, v{T1}")
    A(f"v_add_u32 v{VH}, s52, v{VH}")
    A("s_mov_b32 s28, s16")
    A("s_and_b32 s29, s17, 0xffff")
    A(f"s_mov_b32 s30, {H_BYTES}")
    A("s_mov_b32 s31, 0x00020000")
    A(f"s_mov_b32 s{sC0}, 0xbfb8aa3b")
    A(f"s_mov_b32 s{sC0+1}, 0xbfb8aa3b")
    A(f"s_mov_b32 s{sC1}, 1.0")
    A(f"s_mov_b32 s{sC1+1}, 1.0")
    for i in range(4):
        A(f"v_accvgpr_write_b32 a{84+i}, 0")
    A(f"s_mov_b32 s{sR}, {WBASE}")
    A(f"s_mov_b32 s{sN}, {WBASE+WSLOT}")
    A(f"s_mov_b32 s{sF}, {WBASE+2*WSLOT}")
    A(f"s_sub_u32 s57, s56, {WBASE}")
    A(f"s_mov_b32 s{sKW}, {2*64*7168}")
    A(f"s_mov_b32 s{sKX}, {2*128}")
    A(f"s_mov_b32 s{sMX}, s{sXW}")
    A(f"s_add_u32 s{sMW}, s{sF}, s57")
    A(f"s_mov_b32 s{sCNT}, 0")
    for t in range(14):
        A(f"v_mfma_f32_32x32x16_bf16 v[{16*t}:{16*t+15}], a[84:87], a[84:87], 0")

    def mfmas(wset, xset):
        out = []
        for fb in range(7):
            for mb in range(2):
                t = fb*2+mb
                w = WSET[wset]+4*fb
                x = XSET[xset]+4*mb
                out.append(f"v_mfma_f32_32x32x16_bf16 v[{16*t}:{16*t+15}], a[{w}:{w+3}], a[{x}:{x+3}], v[{16*t}:{16*t+15}]")
        return out
    def wreads(wset, ks):
        out = []
        for fb in range(7):
            w = WSET[wset]+4*fb
            off = ks*16*224 + fb*32
            out.append(f"ds_read_b64_tr_b16 a[{w}:{w+1}], v{VWR} offset:{off}")
            out.append(f"ds_read_b64_tr_b16 a[{w+2}:{w+3}], v{VWR} offset:{off+896}")
        return out
    def xreads(ks):
        out = []
        for mb in range(2):
            x = XSET[ks]+4*mb
            out.append(f"ds_read_b128 a[{x}:{x+3}], v{VXR+ks} offset:{mb*4096}")
        return out

    def p0_fill():
        reads = xreads(0) + wreads(0, 0) + xreads(1)
        return reads
    A("s_waitcnt vmcnt(15)")
    A("s_barrier")
    for r in p0_fill(): A(r)
    A(f"s_mov_b32 m0, s{sMW}")
    A("s_nop 0")
    for i in range(4): A(dma_w(i))
    A("s_branch L1_p1")

    A.raw(".p2align 6")
    A.label("L1_loop")
    A("s_waitcnt vmcnt(15) lgkmcnt(0)")
    A("s_barrier")
    g = {}
    spread(p0_fill(), 0, 2, g)
    g.setdefault(0, []).insert(0, f"s_mov_b32 m0, s{sMW}")
    for n, i in enumerate(range(4)):
        g.setdefault(opt['dma_gaps4'][n], []).append(dma_w(i))
    interleave(A, mfmas(1, 3), g)
    A.label("L1_p1")
    A("s_waitcnt lgkmcnt(0)")
    g = {}
    spread(xreads(2) + wreads(1, 1) + xreads(3), 0, 2, g)
    g.setdefault(0, []).insert(0, f"s_add_u32 m0, s{sMW}, 4096")
    for n, i in enumerate(range(4, 7)):
        g.setdefault(opt['dma_gaps4'][n], []).append(dma_w(i))
    g.setdefault(12, []).append(f"s_add_u32 s{sKW}, s{sKW}, {64*7168}")
    interleave(A, mfmas(0, 0), g)
    A("s_waitcnt lgkmcnt(0)")
    g = {}
    spread(wreads(0, 2), 0, 2, g)
    g.setdefault(0, []).insert(0, f"s_mov_b32 m0, s{sMX}")
    for n, i in enumerate(range(4)):
        g.setdefault(opt['dma_gaps4'][n], []).append(dma_x(i))
    for ks in range(4):
        g.setdefault(8+ks, []).append(f"v_xor_b32 v{VXR+ks}, 0x8000, v{VXR+ks}")
    interleave(A, mfmas(1, 1), g)
    A("s_waitcnt lgkmcnt(0)")
    g = {}
    spread(wreads(1, 3), 0, 2, g)
    g.setdefault(0, []).insert(0, f"s_add_u32 m0, s{sMX}, 4096")
    for n, i in enumerate(range(4, 8)):
        g.setdefault(opt['dma_gaps4'][n], []).append(dma_x(i))
    g.setdefault(7, []).extend([f"s_mov_b32 s{sT}, s{sR}", f"s_mov_b32 s{sR}, s{sN}"])
    g.setdefault(8, []).extend([f"s_mov_b32 s{sN}, s{sF}", f"s_mov_b32 s{sF}, s{sT}"])
    g.setdefault(9, []).extend([f"v_add_u32 v{VWR}, s{sR}, v{VWL}", f"s_add_u32 s{sMW}, s{sF}, s57"])
    g.setdefault(12, []).extend([f"s_xor_b32 s{sMX}, s{sMX}, 0x8000",
                                 f"s_add_u32 s{sKX}, s{sKX}, 128",
                                 f"s_cmp_ge_u32 s{sKX}, 2048",
                                 f"s_cselect_b32 s{sKX}, 0x40000000, s{sKX}"])
    g.setdefault(13, []).extend([f"s_add_u32 s{sCNT}, s{sCNT}, 1",
                                 f"s_cmp_lt_u32 s{sCNT}, 16"])
    interleave(A, mfmas(0, 2), g)
    A("s_cbranch_scc1 L1_loop")
    A("s_waitcnt lgkmcnt(0)")
    for m in mfmas(1, 3): A(m)
    for t in range(14):
        fb, mb = t//2, t % 2
        b = 16*t
        if t == 0: pass
        for p in range(4):
            A(f"v_pk_mul_f32 v[{b+8+2*p}:{b+9+2*p}], v[{b+2*p}:{b+1+2*p}], v[{b+8+2*p}:{b+9+2*p}]")
        for p in range(4):
            A(f"v_pk_mul_f32 v[{b+2*p}:{b+1+2*p}], v[{b+2*p}:{b+1+2*p}], s[{sC0}:{sC0+1}]")
        for e in range(8):
            A(f"v_exp_f32 v{b+e}, v{b+e}")
        for p in range(4):
            A(f"v_pk_add_f32 v[{b+2*p}:{b+1+2*p}], v[{b+2*p}:{b+1+2*p}], s[{sC1}:{sC1+1}]")
        for e in range(8):
            A(f"v_rcp_f32 v{b+e}, v{b+e}")
        for p in range(4):
            A(f"v_pk_mul_f32 v[{b+8+2*p}:{b+9+2*p}], v[{b+2*p}:{b+1+2*p}], v[{b+8+2*p}:{b+9+2*p}]")
        for p in range(4):
            A(f"v_cvt_pk_bf16_f32 v{b+p}, v{b+8+2*p}, v{b+9+2*p}")
        so = mb*H_MB_STRIDE + (fb//4)*4096
        A(f"s_mov_b32 s{sT}, {so}")
        A(f"buffer_store_dwordx4 v[{b}:{b+3}], v{VH}, s[28:31], s{sT} offen offset:{(fb%4)*1024}{opt['h_store_flags']}")
    A.label("L1_end")
    A("s_endpgm")
    return name, 344, 256, LDS1

LDS2 = 98304
OUT_BYTES = 2048*1024*2

def kernel_down(A, opt):
    ACC = 0
    WS = [32, 64]
    VW0, VW1, VR0, VR1, VHL, VO = 96, 97, 98, 99, 100, 101
    T0, T1, T2, T3, T4, T5 = 102, 103, 104, 105, 106, 107
    sWAVE, sKW, sKH, sM, sCNT, sT = 32, 33, 34, 35, 36, 37
    name = "glu_down_kernel"
    A.raw(".text")
    A.raw(f".globl {name}")
    A.raw(".p2align 8")
    A.raw(f".type {name},@function")
    A.label(name)
    A("s_cmp_ge_u32 s2, 256")
    A("s_cbranch_scc1 L2_end")
    A("s_load_dwordx4 s[8:11], s[0:1], 24")
    A("s_load_dwordx2 s[16:17], s[0:1], 48")
    A(f"v_lshrrev_b32 v{T0}, 6, v0")
    A(f"v_and_b32 v{T1}, 63, v0")
    A("s_and_b32 s3, s2, 7")
    A(f"v_readfirstlane_b32 s{sWAVE}, v{T0}")
    A("s_lshr_b32 s48, s2, 3")
    A("s_lshr_b32 s49, s3, 1")
    A("s_lshl_b32 s49, s49, 2")
    A("s_and_b32 s50, s48, 3")
    A("s_add_u32 s49, s49, s50")
    A("s_and_b32 s50, s3, 1")
    A("s_lshl_b32 s50, s50, 3")
    A("s_lshr_b32 s51, s48, 2")
    A("s_add_u32 s50, s50, s51")
    A(f"v_lshrrev_b32 v{T2}, 3, v{T1}")
    A(f"v_and_b32 v{T3}, 7, v{T1}")
    A(f"v_bfe_u32 v{T4}, v{T1}, 4, 1")
    A(f"v_lshlrev_b32 v{T4}, 1, v{T4}")
    A(f"v_xor_b32 v{T3}, v{T3}, v{T4}")
    A(f"v_lshlrev_b32 v{T3}, 4, v{T3}")
    A(f"v_lshl_add_u32 v{T3}, v{T2}, 11, v{T3}")
    A(f"s_lshl_b32 s52, s{sWAVE}, 15")
    A("s_lshl_b32 s53, s50, 7")
    A("s_add_u32 s52, s52, s53")
    A(f"v_add_u32 v{VW0}, s52, v{T3}")
    A(f"v_add_u32 v{VW1}, {16384-1024}, v{VW0}")
    A(f"v_lshlrev_b32 v{VHL}, 4, v{T1}")
    A(f"s_lshl_b32 s{sM}, s{sWAVE}, 11")
    A("s_lshl_b32 s51, s49, 2")
    A(f"s_add_u32 s51, s51, s{sWAVE}")
    A(f"s_mul_i32 s52, s51, {H_MB_STRIDE}")
    A("s_waitcnt lgkmcnt(0)")
    A("s_mov_b32 s20, s8")
    A("s_and_b32 s21, s9, 0xffff")
    A(f"s_mov_b32 s22, {W_BYTES}")
    A("s_mov_b32 s23, 0x00020000")
    A("s_add_u32 s24, s16, s52")
    A("s_addc_u32 s25, s17, 0")
    A("s_and_b32 s25, s25, 0xffff")
    A(f"s_mov_b32 s26, {H_MB_STRIDE}")
    A("s_mov_b32 s27, 0x00020000")
    def dma(i):
        return f"buffer_load_dwordx4 v{VW0+i}, s[20:23], s{sKW} offen offset:{i*1024} lds"
    def hload(slot, ks):
        a = slot*16 + ks*4
        return f"buffer_load_dwordx4 a[{a}:{a+3}], v{VHL}, s[24:27], s{sKH} offen offset:{ks*1024}{opt['h_load_flags']}"
    A(f"s_mov_b32 s{sKW}, 0")
    A(f"s_mov_b32 s{sKH}, 0")
    for st in range(7):
        A(f"s_add_u32 m0, s{sM}, {st*8192}")
        A("s_nop 0")
        A(dma(0)); A(dma(1))
        for ks in range(4): A(hload(st, ks))
        A(f"s_add_u32 s{sKW}, s{sKW}, 131072")
        A(f"s_add_u32 s{sKH}, s{sKH}, 4096")
    A(f"v_lshrrev_b32 v{T2}, 5, v{T1}")
    A(f"v_bfe_u32 v{T3}, v{T1}, 2, 2")
    A(f"v_lshl_add_u32 v{T2}, v{T2}, 2, v{T3}")
    A(f"v_lshlrev_b32 v{T2}, 7, v{T2}")
    A(f"v_and_b32 v{T4}, 1, v{T1}")
    A(f"v_lshl_add_u32 v{T2}, v{T4}, 6, v{T2}")
    A(f"v_bfe_u32 v{T4}, v{T1}, 4, 1")
    A(f"v_bfe_u32 v{T5}, v{T1}, 1, 1")
    A(f"v_lshl_add_u32 v{T4}, v{T4}, 1, v{T5}")
    A(f"v_lshl_add_u32 v{T2}, v{T4}, 3, v{T2}")
    A(f"v_bfe_u32 v{T4}, v{T1}, 3, 1")
    A(f"v_lshl_add_u32 v{VR0}, v{T4}, 5, v{T2}")
    A(f"v_xor_b32 v{VR1}, 32, v{VR0}")
    A(f"v_and_b32 v{T2}, 31, v{T1}")
    A(f"v_lshlrev_b32 v{T2}, 11, v{T2}")
    A(f"v_lshrrev_b32 v{T3}, 5, v{T1}")
    A(f"v_lshl_add_u32 v{T2}, v{T3}, 6, v{T2}")
    A("s_lshl_b32 s52, s51, 16")
    A("s_add_u32 s52, s52, s53")
    A(f"v_add_u32 v{VO}, s52, v{T2}")
    A("s_mov_b32 s28, s10")
    A("s_and_b32 s29, s11, 0xffff")
    A(f"s_mov_b32 s30, {OUT_BYTES}")
    A("s_mov_b32 s31, 0x00020000")
    for i in range(32): A(f"v_mov_b32 v{ACC+i}, 0")
    for i in range(32): A(f"v_mov_b32 v{WS[1]+i}, 0")
    for i in range(16): A(f"v_accvgpr_write_b32 a{7*16+i}, 0")
    A(f"s_mov_b32 s{sCNT}, 0")
    def mf(wset, slot, ks, nb):
        w = WS[wset] + ks*8 + nb*4
        h = slot*16 + ks*4
        return f"v_mfma_f32_32x32x16_bf16 v[{ACC+16*nb}:{ACC+16*nb+15}], v[{w}:{w+3}], a[{h}:{h+3}], v[{ACC+16*nb}:{ACC+16*nb+15}]"
    def rd(wset, slot, ks, nb, half):
        w = WS[wset] + ks*8 + nb*4 + half*2
        return f"ds_read_b64_tr_b16 v[{w}:{w+1}], v{VR0+nb} offset:{slot*8192+ks*2048+half*1024}"
    A.raw(".p2align 6")
    A.label("L2_loop")
    for u in range(8):
        pm = (u-1) % 8
        A("s_waitcnt vmcnt(36) lgkmcnt(0)")
        A("s_barrier")
        A(f"s_add_u32 m0, s{sM}, {pm*8192}")
        reads = [rd(u & 1, u, ks, nb, hf) for ks in range(4) for nb in range(2) for hf in range(2)]
        ms = [mf(pm & 1, pm, ks, nb) for ks in range(4) for nb in range(2)]
        g = {}
        spread(reads, 0, 3, g)
        g.setdefault(0, []).insert(0, dma(0))
        g.setdefault(1, []).insert(0, dma(1))
        for ks in range(4):
            g.setdefault(2*ks+1, []).append(hload(pm, ks))
        g.setdefault(7, []).extend([f"s_add_u32 s{sKW}, s{sKW}, 131072", f"s_add_u32 s{sKH}, s{sKH}, 4096"])
        if u == 7:
            g[7].extend([f"s_add_u32 s{sCNT}, s{sCNT}, 1", f"s_cmp_lt_u32 s{sCNT}, 7"])
        interleave(A, ms, g)
    A("s_cbranch_scc1 L2_loop")
    A("s_waitcnt lgkmcnt(0)")
    for ks in range(4):
        for nb in range(2):
            A(mf(1, 7, ks, nb))
    A("s_nop 15")
    for nb in range(2):
        for p in range(8):
            A(f"v_cvt_pk_bf16_f32 v{32+nb*8+p}, v{ACC+16*nb+2*p}, v{ACC+16*nb+2*p+1}")
    for q in range(4):
        A(f"buffer_store_dwordx4 v[{32+4*q}:{35+4*q}], v{VO}, s[28:31], 0 offen offset:{16*q}")
    A.label("L2_end")
    A("s_endpgm")
    return name, 112+128, 112, LDS2

HEADER = """; Kernarg layout for this problem (56 bytes, ptrs only, base s[0:1]):
"""

def main():
    opt = dict(dma_gaps4=[2, 5, 8, 11], h_store_flags="", h_load_flags="")
    for a in sys.argv[2:]:
        k, v = a.split("=", 1)
        opt[k] = eval(v)
    A = Asm()
    ks = [kernel_up(A, opt), kernel_down(A, opt)]
    out = HEADER
    for name, nv, ao, lds in ks:
        out += f"; @launch kernel={name} grid=(256,1,1) block=(256,1,1) lds={lds}\n"
    out += '.amdgcn_target "amdgcn-amd-amdhsa--gfx950"\n'
    out += A.text()
    out += '.section .rodata,"a"\n'
    for name, nv, ao, lds in ks:
        out += f""".p2align 6
.amdhsa_kernel {name}
  .amdhsa_next_free_vgpr {nv}
  .amdhsa_next_free_sgpr 64
  .amdhsa_accum_offset {ao}
  .amdhsa_group_segment_fixed_size 0
  .amdhsa_kernarg_size 56
  .amdhsa_user_sgpr_count 2
  .amdhsa_user_sgpr_kernarg_segment_ptr 1
  .amdhsa_system_sgpr_workgroup_id_x 1
.end_amdhsa_kernel
"""
    open(sys.argv[1], "w").write(out)

main()
```

```python
import sys

class Asm:
    def __init__(self):
        self.lines = []
    def __call__(self, s):
        self.lines.append("    " + s)
    def label(self, s):
        self.lines.append(s + ":")
    def raw(self, s):
        self.lines.append(s)
    def text(self):
        return "\n".join(self.lines) + "\n"

DROP = set()
def emit_phase(A, mfmas, fillers):
    if 'rdw' in DROP: fillers = [(g, i) for g, i in fillers if not i.startswith("ds_read_b64_tr")]
    if 'rdx' in DROP: fillers = [(g, i) for g, i in fillers if not i.startswith("ds_read_b128")]
    if 'dma' in DROP: fillers = [(g, i) for g, i in fillers if not i.startswith("buffer_load")]
    g = {}
    for gap, ins in fillers:
        g.setdefault(gap, []).append(ins)
    if mfmas is None:
        for k in sorted(g):
            for ins in g[k]: A(ins)
        return
    for ins in g.get(-1, []): A(ins)
    for i, m in enumerate(mfmas):
        A(m)
        for ins in g.get(i, []): A(ins)
    assert max(g) < len(mfmas)

def place(items, gaps):
    assert len(items) <= len(gaps), (len(items), len(gaps))
    return list(zip(gaps, items))

def stamp(A, opt, i, real=False):
    if opt.get('stamps'):
        A(f"s_mem{'real' if real else ''}time s[{64+2*i}:{65+2*i}]")

def stamp_dump(A, opt, kidx, sWAVE, vt):
    if not opt.get('stamps'): return
    A("s_waitcnt vmcnt(0) lgkmcnt(0)")
    stamp(A, opt, 14)
    stamp(A, opt, 15, True)
    A("s_waitcnt lgkmcnt(0)")
    A("s_add_u32 s60, s16, 0x8000000")
    A("s_addc_u32 s61, s17, 0")
    A("s_and_b32 s61, s61, 0xffff")
    A("s_mov_b32 s62, 0x1000000")
    A("s_mov_b32 s63, 0x00020000")
    A("s_lshl_b32 s58, s2, 2")
    A(f"s_add_u32 s58, s58, s{sWAVE}")
    A(f"s_add_u32 s58, s58, {kidx*1024}")
    A("s_lshl_b32 s58, s58, 7")
    A("s_mov_b64 exec, 1")
    A(f"v_mov_b32 v{vt+1}, 0")
    for i in range(32):
        A(f"v_mov_b32 v{vt}, s{64+i}")
        A(f"buffer_store_dword v{vt}, v{vt+1}, s[60:63], s58 offen offset:{4*i}")
        A("s_nop 1")

X_BYTES = 2048*1024*2
W_BYTES = 1024*3584*2
OUT_BYTES = 2048*1024*2
H_MB_STRIDE = 224*1024
H_BYTES = 64*H_MB_STRIDE
FLAG_OFF = 32 << 20
XCH_OFF = 48 << 20
WBASE = 65536
WSLOT = 32768
LDS1 = 163840
MF = "v_mfma_f32_16x16x32_bf16"

def kernel_up(A, opt):
    VOW = 224
    VOX = 232
    VWR = 240
    VXR = 247
    VPF = 249
    VDUM = 250
    VLANE = 251
    T0, T1, T2, T3 = 252, 253, 254, 255
    WSET = [0, 56]
    XSET = [112, 128]
    NA = 144
    sWAVE, sKX, sKW, sMX, sMW, sDR, sCNT, sT, sXW, sWW = 32, 33, 34, 35, 36, 37, 38, 39, 40, 41
    sPFW, sPF2, sRS = 42, 43, 47
    sC0, sC1 = 44, 18
    name = "glu_up_kernel"
    A.raw(".text"); A.raw(f".globl {name}"); A.raw(".p2align 8"); A.raw(f".type {name},@function")
    A.label(name)
    A("s_cmp_ge_u32 s2, 256")
    A("s_cbranch_scc1 L1_end")
    stamp(A, opt, 0); stamp(A, opt, 1, True)
    A("s_load_dwordx8 s[4:11], s[0:1], 0")
    A("s_load_dwordx2 s[16:17], s[0:1], 48")
    A(f"v_lshrrev_b32 v{T0}, 6, v0")
    A(f"v_and_b32 v{VLANE}, 63, v0")
    A("s_and_b32 s3, s2, 7")
    A(f"v_readfirstlane_b32 s{sWAVE}, v{T0}")
    A("s_lshr_b32 s48, s2, 3")
    A("s_and_b32 s49, s3, 1")
    A("s_lshl_b32 s49, s49, 2")
    A("s_and_b32 s50, s48, 3")
    A("s_add_u32 s49, s49, s50")
    A("s_lshr_b32 s50, s3, 1")
    A("s_lshl_b32 s50, s50, 3")
    A("s_lshr_b32 s51, s48, 2")
    A("s_add_u32 s50, s50, s51")
    A(f"s_and_b32 s52, s{sWAVE}, 1")
    A("s_lshl_b32 s57, s48, 2")
    A(f"s_add_u32 s57, s57, s{sWAVE}")
    A("s_lshl_b32 s57, s57, 14")
    A("s_and_b32 s58, s3, 1")
    A("s_lshl_b32 s58, s58, 21")
    A("s_add_u32 s60, s57, s58")
    A(f"v_lshrrev_b32 v{T0}, 3, v{VLANE}")
    A(f"v_and_b32 v{T1}, 7, v{VLANE}")
    A(f"v_lshlrev_b32 v{T1}, 6, v{T1}")
    A(f"v_lshl_add_u32 v4, v{T0}, 11, v{T1}")
    A("v_add_u32 v4, s60, v4")
    A("s_lshl_b32 s57, s48, 1")
    A("s_add_u32 s57, s57, s52")
    A("s_mul_i32 s57, s57, 7168")
    A("s_lshr_b32 s58, s3, 1")
    A("s_mul_i32 s58, s58, 1792")
    A("s_add_u32 s61, s57, s58")
    A(f"v_lshlrev_b32 v5, 6, v{VLANE}")
    A("v_add_u32 v5, s61, v5")
    A(f"v_add_u32 v6, {64*7168 - 28*64}, v5")
    A(f"v_cmp_gt_u32 vcc, 28, v{VLANE}")
    A("v_mov_b32 v0, 0x40000000")
    A("s_nop 0")
    A("v_cndmask_b32 v5, v6, v5, vcc")
    A(f"v_cmp_gt_u32 vcc, 56, v{VLANE}")
    A(f"s_mov_b32 s62, {64*7168}")
    A(f"s_mov_b32 s63, {3*64*7168}")
    A("v_cndmask_b32 v5, v0, v5, vcc")
    A(f"v_lshrrev_b32 v{T0}, 4, v{VLANE}")
    A(f"v_bfe_u32 v{T1}, v{VLANE}, 1, 3")
    A(f"v_xor_b32 v{T1}, v{T1}, v{T0}")
    A(f"v_and_b32 v{T2}, 1, v{VLANE}")
    A(f"v_lshlrev_b32 v{T2}, 4, v{T2}")
    A("s_movk_i32 s55, 7168")
    A(f"v_mad_u32_u24 v{T2}, v{T0}, s55, v{T2}")
    A(f"s_and_b32 s52, s{sWAVE}, 1")
    A("s_mul_i32 s53, s52, 229376")
    A("s_mul_i32 s54, s50, 224")
    A("s_add_u32 s53, s53, s54")
    A(f"v_add_u32 v{T2}, s53, v{T2}")
    A(f"v_mov_b32 v0, 0x40000000")
    for pat in range(2):
        d = 1+pat
        if pat: A(f"v_xor_b32 v{T1}, 4, v{T1}")
        A(f"v_lshl_add_u32 v{d}, v{T1}, 5, v{T2}")
        A(f"v_cmp_eq_u32 vcc, 7, v{T1}")
        A("s_nop 1")
        A(f"v_cndmask_b32 v{d}, v{d}, v0, vcc")
    for i in range(8):
        c = i*4*7168 - (i & 3)*1024
        A(f"v_add_u32 v{VOW+i}, {c}, v{1+((i>>1)&1)}")
    A(f"v_lshrrev_b32 v{T0}, 3, v{VLANE}")
    A(f"v_and_b32 v{T1}, 7, v{VLANE}")
    A(f"v_lshrrev_b32 v{T2}, 1, v{T0}")
    A(f"v_xor_b32 v{T1}, v{T1}, v{T2}")
    A(f"v_lshlrev_b32 v{T1}, 4, v{T1}")
    A(f"v_lshl_add_u32 v{T1}, v{T0}, 11, v{T1}")
    A("s_lshl_b32 s51, s49, 2")
    A(f"s_add_u32 s51, s51, s{sWAVE}")
    A("s_lshl_b32 s53, s51, 17")
    A(f"v_add_u32 v{T1}, s53, v{T1}")
    A(f"v_xor_b32 v{T2}, 64, v{T1}")
    for i in range(8):
        c = i*16384 - (i & 3)*1024
        A(f"v_add_u32 v{VOX+i}, {c}, v{T2 if i & 1 else T1}")
    A(f"s_lshl_b32 s{sXW}, s{sWAVE}, 13")
    A(f"s_add_u32 s{sWW}, s{sXW}, {WBASE}")
    A("s_waitcnt lgkmcnt(0)")
    A("s_mov_b32 s20, s4")
    A("s_and_b32 s21, s5, 0xffff")
    A(f"s_mov_b32 s22, {X_BYTES}")
    A("s_mov_b32 s23, 0x00020000")
    A(f"s_cmp_ge_u32 s{sWAVE}, 2")
    A("s_cselect_b32 s24, s8, s6")
    A("s_cselect_b32 s25, s9, s7")
    A("s_and_b32 s25, s25, 0xffff")
    A(f"s_mov_b32 s26, {W_BYTES}")
    A("s_mov_b32 s27, 0x00020000")

    def dma_w(i): return f"buffer_load_dwordx4 v{VOW+i}, s[24:27], s{sKW} offen offset:{(i&3)*1024} lds"
    def dma_x(i): return f"buffer_load_dwordx4 v{VOX+i}, s[20:23], s{sKX} offen offset:{(i&3)*1024} lds"
    def issue_stage(st, which="wx"):
        if "w" in which:
            A(f"s_mov_b32 s{sKW}, {st*64*7168}")
            for h in range(2):
                A(f"s_add_u32 m0, s{sWW}, {st*WSLOT+h*4096}")
                A("s_nop 0")
                for i in range(4*h, 4*h+4): A(dma_w(i))
        if "x" in which:
            A(f"s_mov_b32 s{sKX}, {st*128}")
            for h in range(2):
                A(f"s_add_u32 m0, s{sXW}, {st*32768+h*4096}")
                A("s_nop 0")
                for i in range(4*h, 4*h+4): A(dma_x(i))
    if opt.get('early_pf'):
        A(f"buffer_load_dword a{NA}, v5, s[24:27], s62 offen")
        A(f"buffer_load_dword a{NA}, v4, s[20:23], 0 offen offset:128")
        A(f"buffer_load_dword a{NA}, v5, s[24:27], s63 offen")
    issue_stage(0)
    stamp(A, opt, 2)
    A(f"v_and_b32 v{T0}, 15, v{VLANE}")
    A(f"v_lshrrev_b32 v{T1}, 4, v{VLANE}")
    A(f"v_bfe_u32 v{T2}, v{VLANE}, 1, 3")
    A(f"v_xor_b32 v{T2}, v{T2}, v{T1}")
    A(f"v_lshlrev_b32 v{T2}, 4, v{T2}")
    A(f"v_lshl_add_u32 v{T2}, v{T0}, 7, v{T2}")
    A(f"v_add_u32 v{VXR}, s{sXW}, v{T2}")
    A(f"v_xor_b32 v{VXR+1}, 64, v{VXR}")
    A(f"v_bfe_u32 v{T0}, v{VLANE}, 2, 3")
    A(f"v_bfe_u32 v{T2}, v{VLANE}, 2, 2")
    A(f"v_lshl_add_u32 v{T2}, v{T1}, 3, v{T2}")
    A(f"v_lshlrev_b32 v{T2}, 8, v{T2}")
    A(f"v_and_b32 v{T3}, 3, v{VLANE}")
    A(f"v_lshl_add_u32 v{T2}, v{T3}, 3, v{T2}")
    A(f"v_add_u32 v{T2}, {WBASE}, v{T2}")
    for fb in range(7):
        A(f"v_xor_b32 v{T3}, {fb}, v{T0}")
        A(f"v_lshl_add_u32 v{VWR+fb}, v{T3}, 5, v{T2}")
    VPX, VPW, VP2 = VPF, T3, VDUM+0
    A("s_mov_b32 s12, s10")
    A("s_and_b32 s13, s11, 0xffff")
    A(f"s_mov_b32 s14, {W_BYTES}")
    A("s_mov_b32 s15, 0x00020000")
    A("s_lshl_b32 s56, s2, 2")
    A(f"s_add_u32 s56, s56, s{sWAVE}")
    A(f"v_mov_b32 v0, 0x40000000")
    A("s_lshl_b32 s57, s48, 2")
    A(f"s_add_u32 s57, s57, s{sWAVE}")
    A("s_lshl_b32 s57, s57, 14")
    A("s_and_b32 s58, s3, 1")
    A("s_lshl_b32 s58, s58, 21")
    A("s_add_u32 s57, s57, s58")
    A(f"v_lshrrev_b32 v{T0}, 1, v{VLANE}")
    A(f"v_lshlrev_b32 v{T0}, 11, v{T0}")
    A(f"v_and_b32 v{T1}, 1, v{VLANE}")
    A(f"v_lshl_add_u32 v{T0}, v{T1}, 6, v{T0}")
    A(f"v_add_u32 v{T0}, s57, v{T0}")
    A(f"v_cmp_gt_u32 vcc, 16, v{VLANE}")
    A("s_nop 1")
    A(f"v_cndmask_b32 v{VPX}, v0, v{T0}, vcc")
    A("s_lshl_b32 s57, s48, 1")
    A("s_add_u32 s57, s57, s52")
    A("s_mul_i32 s57, s57, 7168")
    A("s_lshr_b32 s58, s3, 1")
    A("s_mul_i32 s58, s58, 1792")
    A("s_add_u32 s57, s57, s58")
    A(f"v_lshlrev_b32 v{T1}, 6, v{VLANE}")
    A(f"v_add_u32 v{T0}, s57, v{T1}")
    A(f"v_cmp_gt_u32 vcc, 28, v{VLANE}")
    A("s_nop 1")
    A(f"v_cndmask_b32 v{VPW}, v0, v{T0}, vcc")
    A("s_lshl_b32 s57, s56, 9")
    A(f"v_add_u32 v{T0}, s57, v{T1}")
    A(f"v_cmp_gt_u32 vcc, 8, v{VLANE}")
    A("s_nop 1")
    A(f"v_cndmask_b32 v{VP2}, v0, v{T0}, vcc")
    A(f"s_mov_b32 s{sPF2}, 0")
    A("s_mov_b32 s28, s16")
    A("s_and_b32 s29, s17, 0xffff")
    A(f"s_mov_b32 s30, {FLAG_OFF + 65536}")
    A("s_mov_b32 s31, 0x00020000")
    A(f"s_mov_b32 s{sC0}, 0xbfb8aa3b")
    A(f"s_mov_b32 s{sC0+1}, 0xbfb8aa3b")
    A(f"s_mov_b32 s{sC1}, 1.0")
    A(f"s_mov_b32 s{sC1+1}, 1.0")
    for i in range(4): A(f"v_accvgpr_write_b32 a{NA-4+i}, 0")
    A(f"v_lshlrev_b32 v{T0}, 24, v{VLANE}")
    A(f"v_mov_b32 v{T1}, 0")
    A("s_lshl_b32 s59, s56, 6")
    A(f"s_add_u32 s59, s59, {FLAG_OFF}")
    PFD = opt['pf_dist']
    def pf_x(so): return f"buffer_load_dword a{NA}, v{VPX}, s[20:23], {so} offen"
    def pf_w(so): return f"buffer_load_dword a{NA}, v{VPW}, s[24:27], {so} offen"
    def pf_2(): return f"buffer_load_dword a{NA}, v{VP2}, s[12:15], s{sPF2} offen"
    for t in range(14):
        A(f"v_mfma_f32_32x32x16_bf16 v[{16*t}:{16*t+15}], a[{NA-4}:{NA-1}], a[{NA-4}:{NA-1}], 0")

    def acc(fb, gu, mb): return 4*((fb*2+gu)*4+mb)
    def mfmas(st):
        out = []
        for fb in range(7):
            for gu in range(2):
                for mb in range(4):
                    c = acc(fb, gu, mb); w = WSET[st]+4*(fb*2+gu); x = XSET[st]+4*mb
                    out.append(f"{MF} v[{c}:{c+3}], a[{w}:{w+3}], a[{x}:{x+3}], v[{c}:{c+3}]")
        return out
    def wreads(st, ks):
        out = []
        for fb in range(7):
            for gu in range(2):
                w = WSET[st]+4*(fb*2+gu); off = ks*8192 + gu*16384
                out.append(f"ds_read_b64_tr_b16 a[{w}:{w+1}], v{VWR+fb} offset:{off}")
                out.append(f"ds_read_b64_tr_b16 a[{w+2}:{w+3}], v{VWR+fb} offset:{off+1024}")
        return out
    def xreads(st, ks):
        return [f"ds_read_b128 a[{XSET[st]+4*mb}:{XSET[st]+4*mb+3}], v{VXR+ks} offset:{mb*2048}" for mb in range(4)]

    NPF = opt['npf']
    NV = 16 + 2*NPF
    sPX, sPW = 57, 58
    A(f"buffer_store_dword v{T1}, v{T0}, s[28:31], s59 offen")
    npro = 0
    for st in range(2, PFD if opt.get('pro_pf') else 2):
        A(f"s_mov_b32 s{sPX}, {st*128}")
        A(f"s_mov_b32 s{sPW}, {st*64*7168}")
        A(pf_w(f"s{sPW}")); A(pf_x(f"s{sPX}")); npro += 2
    issue_stage(1)
    A(f"s_mov_b32 s{sKW}, {2*64*7168}")
    A(f"s_mov_b32 s{sKX}, {2*128}")
    A(f"s_mov_b32 s{sPX}, {PFD*128}")
    A(f"s_mov_b32 s{sPW}, {PFD*64*7168}")
    A(f"s_mov_b32 s{sMX}, s{sXW}")
    A(f"s_add_u32 s{sMW}, s{sWW}, {2*WSLOT}")
    A(f"s_mov_b32 s{sRS}, 0")
    A(f"s_mov_b32 s46, {WSLOT}")
    A(f"s_mov_b32 s{sCNT}, 0")
    stamp(A, opt, 3)
    A(f"s_waitcnt vmcnt({1+npro+16})")
    A("s_barrier")
    stamp(A, opt, 4); stamp(A, opt, 8, True)
    for r in xreads(0, 0) + wreads(0, 0): A(r)
    rg = opt['rd_gaps']

    def q1(first):
        A("s_waitcnt lgkmcnt(0)")
        f = place(xreads(1, 1) + wreads(1, 1), rg)
        if first:
            dg = opt['q1f_dma']
            nw = 8
            f += [(dg[0]-1, f"s_mov_b32 m0, s{sMW}"), (dg[4]-1, f"s_add_u32 m0, s{sMW}, 4096")]
        else:
            dg = opt['q1_dma']
            nw = 2
        f += place([dma_w(i) for i in range(8-nw, 8)], dg[0:nw])
        xg = dg[nw:nw+8]; pg = dg[nw+8:]
        f += [(xg[0]-2, "s_waitcnt lgkmcnt(8)"), (xg[0]-1, f"s_mov_b32 m0, s{sMX}"), (xg[4]-1, f"s_add_u32 m0, s{sMX}, 4096")]
        assert sum(1 for g in rg if g <= xg[0]-2) >= 12 and xg[0]-1 > dg[nw-1]
        f += place([dma_x(i) for i in range(8)], xg)
        f += place(([pf_w(f"s{sPW}"), pf_x(f"s{sPX}")] if NPF == 3 else []) + [pf_2()], pg)
        b = max(rg)+1
        w = dg[nw-1]
        f += [(w+1, f"s_add_u32 s{sKW}, s{sKW}, {64*7168}"),
              (w+1, f"s_lshl_b32 s{sT}, s{sRS}, 15"), (w+2, f"s_add_u32 s{sMW}, s{sWW}, s{sT}"),
              (w+2, f"s_add_u32 s{sRS}, s{sRS}, 1"), (w+3, f"s_cmp_eq_u32 s{sRS}, 3"),
              (w+3, f"s_cselect_b32 s{sDR}, {(-2*WSLOT) & 0xffffffff}, s46"), (w+3, f"s_cselect_b32 s{sRS}, 0, s{sRS}")]
        assert w+3 < b
        for k in range(7):
            f.append((b+k, f"v_add_u32 v{VWR+k}, s{sDR}, v{VWR+k}"))
        f += [(b+7, f"v_xor_b32 v{VXR}, 0x8000, v{VXR}"), (b+8, f"v_xor_b32 v{VXR+1}, 0x8000, v{VXR+1}")]
        e = xg[7]+1
        f += [(e, f"s_xor_b32 s{sMX}, s{sMX}, 0x8000"), (e, f"s_add_u32 s{sKX}, s{sKX}, 128"),
              (e+1, f"s_cmp_ge_u32 s{sKX}, 2048"), (e+1, f"s_cselect_b32 s{sKX}, 0x40000000, s{sKX}")]
        e = max(dg)+1
        assert e+1 <= 55 and b+8 <= 55
        f += [(e, f"s_add_u32 s{sPW}, s{sPW}, {64*7168}"), (e, f"s_add_u32 s{sPF2}, s{sPF2}, 524288"), (e, f"s_add_u32 s{sPX}, s{sPX}, 128"),
              (e+1, f"s_cmp_ge_u32 s{sPX}, 2048"), (e+1, f"s_cselect_b32 s{sPX}, 0x40000000, s{sPX}"),
              (55, f"s_add_u32 s{sCNT}, s{sCNT}, 1"), (55, f"s_cmp_lt_u32 s{sCNT}, 16")]
        if opt.get('stamps') and not first:
            for n, (k, si) in enumerate([(1, 7), (2, 10), (4, 11), (8, 12), (12, 13)]):
                f += [(20+4*n, f"s_cmp_eq_u32 s{sCNT}, {k}"), (20+4*n, f"s_cselect_b64 s[{64+2*si}:{65+2*si}], s[96:97], s[{64+2*si}:{65+2*si}]")]
        emit_phase(A, mfmas(0), f)
    q1(True)
    A(f"s_waitcnt vmcnt({16+NPF}) lgkmcnt(0)")
    A("s_branch L1_bar")
    A.raw(".p2align 6")
    A.label("L1_loop")
    DROP.update(opt.get('drop', []))
    A(f"s_waitcnt vmcnt({NV}) lgkmcnt(0)")
    A.label("L1_bar")
    A("s_barrier")
    if opt.get('stamps'): A("s_memtime s[96:97]")
    f = place(xreads(0, 0) + wreads(0, 0), rg)
    dg = opt['q0_dma']
    f += [(dg[0]-1, f"s_mov_b32 m0, s{sMW}"), (dg[4]-1, f"s_add_u32 m0, s{sMW}, 4096")]
    f += place([dma_w(i) for i in range(6)], dg)
    emit_phase(A, mfmas(1), f)
    q1(False)
    A("s_cbranch_scc1 L1_loop")
    DROP.clear()
    stamp(A, opt, 5); stamp(A, opt, 9, True)
    A("s_waitcnt lgkmcnt(0)")
    VH = VOW
    f = [(0, "s_lshl_b32 s52, s51, 1"), (1, f"s_mul_i32 s52, s52, {H_MB_STRIDE}"), (2, "s_mul_i32 s53, s50, 7168"),
         (3, "s_add_u32 s52, s52, s53"), (4, f"v_lshlrev_b32 v{VH}, 4, v{VLANE}"), (5, f"v_add_u32 v{VH}, s52, v{VH}")]
    emit_phase(A, mfmas(1), f)
    for fb in range(7):
        for p in range(2):
            g = acc(fb, 0, 2*p); u = acc(fb, 1, 2*p)
            for i in range(4): A(f"v_pk_mul_f32 v[{u+2*i}:{u+2*i+1}], v[{g+2*i}:{g+2*i+1}], v[{u+2*i}:{u+2*i+1}]")
            for i in range(4): A(f"v_pk_mul_f32 v[{g+2*i}:{g+2*i+1}], v[{g+2*i}:{g+2*i+1}], s[{sC0}:{sC0+1}]")
            for i in range(8): A(f"v_exp_f32 v{g+i}, v{g+i}")
            for i in range(4): A(f"v_pk_add_f32 v[{g+2*i}:{g+2*i+1}], v[{g+2*i}:{g+2*i+1}], s[{sC1}:{sC1+1}]")
            for i in range(8): A(f"v_rcp_f32 v{g+i}, v{g+i}")
            for i in range(4): A(f"v_pk_mul_f32 v[{u+2*i}:{u+2*i+1}], v[{g+2*i}:{g+2*i+1}], v[{u+2*i}:{u+2*i+1}]")
            for i in range(4): A(f"v_cvt_pk_bf16_f32 v{g+i}, v{u+2*i}, v{u+2*i+1}")
            so = p*H_MB_STRIDE + (fb//4)*4096
            A(f"s_mov_b32 s{sT}, {so}")
            A("s_nop 0")
            A(f"v_permlane16_swap_b32 v{g}, v{g+2}")
            A(f"v_permlane16_swap_b32 v{g+1}, v{g+3}")
            A(f"buffer_store_dwordx4 v[{g}:{g+3}], v{VH}, s[28:31], s{sT} offen offset:{(fb%4)*1024}{opt['h_store_flags']}")
    stamp(A, opt, 6)
    stamp_dump(A, opt, 0, sWAVE, T0)
    A.label("L1_end")
    A("s_endpgm")
    return name, 256+NA+1, 256, LDS1

def kernel_down(A, opt):
    R = 7
    LDS2 = R*16384
    ACC = 0
    WS = [64, 96]
    VWD = 128
    VRD = 132
    VHL, VO, VLANE, VX = 148, 149, 150, 151
    T0, T1, T2, T3 = 152, 153, 154, 155
    NVG = 156
    sWAVE, sKW, sKH, sM, sCNT, sT, sKHALF = 32, 33, 34, 35, 36, 37, 38
    name = "glu_down_kernel"
    A.raw(".text"); A.raw(f".globl {name}"); A.raw(".p2align 8"); A.raw(f".type {name},@function")
    A.label(name)
    A("s_cmp_ge_u32 s2, 256")
    A("s_cbranch_scc1 L2_end")
    stamp(A, opt, 0); stamp(A, opt, 1, True)
    A("s_load_dwordx4 s[8:11], s[0:1], 24")
    A("s_load_dwordx2 s[16:17], s[0:1], 48")
    A(f"v_lshrrev_b32 v{T0}, 6, v0")
    A(f"v_and_b32 v{VLANE}, 63, v0")
    A("s_and_b32 s3, s2, 7")
    A(f"v_readfirstlane_b32 s{sWAVE}, v{T0}")
    A("s_lshr_b32 s48, s2, 3")
    A(f"s_and_b32 s{sKHALF}, s3, 1")
    A("s_lshr_b32 s49, s3, 1")
    A("s_lshl_b32 s49, s49, 2")
    A("s_and_b32 s50, s48, 3")
    A("s_add_u32 s49, s49, s50")
    A("s_lshr_b32 s50, s48, 2")
    A(f"v_lshrrev_b32 v{T0}, 4, v{VLANE}")
    A(f"v_bfe_u32 v{T1}, v{VLANE}, 1, 3")
    A(f"v_xor_b32 v{T1}, v{T1}, v{T0}")
    A(f"v_and_b32 v{T2}, 1, v{VLANE}")
    A(f"v_lshlrev_b32 v{T2}, 4, v{T2}")
    A(f"v_lshl_add_u32 v{T2}, v{T0}, 11, v{T2}")
    A(f"v_lshl_add_u32 v{T2}, v{T1}, 5, v{T2}")
    A(f"s_lshl_b32 s52, s{sWAVE}, 15")
    A("s_lshl_b32 s53, s50, 8")
    A("s_add_u32 s52, s52, s53")
    A(f"v_add_u32 v{T2}, s52, v{T2}")
    A(f"v_xor_b32 v{T3}, 128, v{T2}")
    for i in range(4):
        A(f"v_add_u32 v{VWD+i}, {i*8192 - i*1024}, v{T3 if (i >> 1) & 1 else T2}")
    A(f"v_and_b32 v{T0}, 15, v{VLANE}")
    A(f"v_bfe_u32 v{T1}, v{VLANE}, 4, 1")
    A(f"v_lshl_add_u32 v{T0}, v{T1}, 5, v{T0}")
    A(f"v_lshlrev_b32 v{T0}, 4, v{T0}")
    A(f"v_lshrrev_b32 v{T1}, 5, v{VLANE}")
    A(f"v_lshl_add_u32 v{VHL}, v{T1}, 10, v{T0}")
    A(f"s_lshl_b32 s{sM}, s{sWAVE}, 12")
    A("s_lshl_b32 s51, s49, 2")
    A(f"s_add_u32 s51, s51, s{sWAVE}")
    A(f"s_mul_i32 s52, s51, {H_MB_STRIDE}")
    A(f"s_mul_i32 s54, s{sKHALF}, {H_MB_STRIDE//2}")
    A("s_add_u32 s52, s52, s54")
    A(f"s_mul_i32 s54, s{sKHALF}, {W_BYTES//2}")
    A("s_waitcnt lgkmcnt(0)")
    A("s_add_u32 s20, s8, s54")
    A("s_addc_u32 s21, s9, 0")
    A("s_and_b32 s21, s21, 0xffff")
    A(f"s_mov_b32 s22, {W_BYTES//2}")
    A("s_mov_b32 s23, 0x00020000")
    A("s_add_u32 s24, s16, s52")
    A("s_addc_u32 s25, s17, 0")
    A("s_and_b32 s25, s25, 0xffff")
    A(f"s_mov_b32 s26, {H_MB_STRIDE//2}")
    A("s_mov_b32 s27, 0x00020000")
    def dma(i): return f"buffer_load_dwordx4 v{VWD+i}, s[20:23], s{sKW} offen offset:{i*1024} lds"
    def hreg(slot, ks, mb): return slot*16 + ks*8 + mb*4
    def hload(slot, ks, mb):
        a = hreg(slot, ks, mb)
        return f"buffer_load_dwordx4 a[{a}:{a+3}], v{VHL}, s[24:27], s{sKH} offen offset:{ks*2048+mb*256}{opt['h_load_flags']}"
    A(f"s_mov_b32 s{sKW}, 0")
    A(f"s_mov_b32 s{sKH}, 0")
    PD = R-1
    for st in range(PD):
        A(f"s_add_u32 m0, s{sM}, {st*16384}")
        A("s_nop 0")
        for i in range(4): A(dma(i))
        for ks in range(2):
            for mb in range(2): A(hload(st, ks, mb))
        A(f"s_add_u32 s{sKW}, s{sKW}, 131072")
        A(f"s_add_u32 s{sKH}, s{sKH}, 4096")
        if st == 0:
            A(f"v_lshrrev_b32 v{T1}, 4, v{VLANE}")
            A(f"v_bfe_u32 v{T0}, v{VLANE}, 2, 3")
            A(f"v_bfe_u32 v{T2}, v{VLANE}, 2, 2")
            A(f"v_lshl_add_u32 v{T2}, v{T1}, 3, v{T2}")
            A(f"v_lshlrev_b32 v{T2}, 8, v{T2}")
            A(f"v_and_b32 v{T3}, 3, v{VLANE}")
            A(f"v_lshl_add_u32 v{T2}, v{T3}, 3, v{T2}")
            for nb in range(8):
                A(f"v_xor_b32 v{T3}, {nb}, v{T0}")
                A(f"v_lshl_add_u32 v{VRD+nb}, v{T3}, 5, v{T2}")
                A(f"v_add_u32 v{VRD+8+nb}, 0x10000, v{VRD+nb}")
        if st == 1:
            for i in range(64): A(f"v_mov_b32 v{ACC+i}, 0")
            for i in range(32): A(f"v_mov_b32 v{WS[1]+i}, 0")
            for i in range(8): A(f"v_accvgpr_write_b32 a{hreg(R-1,1,0)+i}, 0")
    stamp(A, opt, 2)
    A(f"s_mov_b32 s{sCNT}, 0")
    def mf(st, slot, ks):
        out = []
        for nb in range(8):
            for mb in range(2):
                c = ACC+4*(nb*2+mb); w = WS[st]+4*nb; h = hreg(slot, ks, mb)
                out.append(f"{MF} v[{c}:{c+3}], v[{w}:{w+3}], a[{h}:{h+3}], v[{c}:{c+3}]")
        return out
    def rd(st, slot, ks):
        out = []
        for nb in range(8):
            w = WS[st]+4*nb
            base = VRD + nb + (8 if slot >= 4 else 0)
            off = (slot & 3)*16384 + ks*8192
            out.append(f"ds_read_b64_tr_b16 v[{w}:{w+1}], v{base} offset:{off}")
            out.append(f"ds_read_b64_tr_b16 v[{w+2}:{w+3}], v{base} offset:{off+1024}")
        return out
    stamp(A, opt, 3)
    A.raw(".p2align 6")
    A.label("L2_loop")
    for u in range(R):
        pm = (u-1) % R
        A(f"s_waitcnt vmcnt({8*(PD-1)}) lgkmcnt(0)")
        A("s_barrier")
        A(f"s_add_u32 m0, s{sM}, {pm*16384}")
        rds = rd(0, u, 0)
        f = [(i//2 + (i//2)//2, r) for i, r in enumerate(rds)]
        f += [(2, dma(0)), (5, dma(1)), (8, dma(2)), (11, dma(3)), (13, hload(pm, 0, 0)), (15, hload(pm, 0, 1))]
        emit_phase(A, mf(1, pm, 1), f)
        A("s_waitcnt lgkmcnt(0)")
        rds = rd(1, u, 1)
        f = [(i//2 + (i//2)//2, r) for i, r in enumerate(rds)]
        f += [(2, hload(pm, 1, 0)), (8, hload(pm, 1, 1))]
        f += [(12, f"s_add_u32 s{sKW}, s{sKW}, 131072"), (13, f"s_add_u32 s{sKH}, s{sKH}, 4096")]
        if u == R-1:
            f += [(14, f"s_add_u32 s{sCNT}, s{sCNT}, 1"), (15, f"s_cmp_lt_u32 s{sCNT}, {28//R}")]
        emit_phase(A, mf(0, u, 0), f)
    A("s_cbranch_scc1 L2_loop")
    stamp(A, opt, 5)
    A("s_waitcnt lgkmcnt(0)")
    f = [(0, "s_lshl_b32 s56, s2, 2"), (0, f"s_add_u32 s56, s56, s{sWAVE}"),
         (1, "s_xor_b32 s57, s56, 4"),
         (1, "s_mov_b32 s28, s16"), (2, "s_and_b32 s29, s17, 0xffff"), (2, f"s_mov_b32 s30, {XCH_OFF + (8<<20)}"), (3, "s_mov_b32 s31, 0x00020000"),
         (3, "s_lshl_b32 s40, s56, 13"), (4, f"s_add_u32 s40, s40, {XCH_OFF}"),
         (4, "s_lshl_b32 s41, s57, 13"), (5, f"s_add_u32 s41, s41, {XCH_OFF}"),
         (5, "s_lshl_b32 s42, s56, 6"), (6, f"s_add_u32 s42, s42, {FLAG_OFF}"),
         (6, "s_lshl_b32 s43, s57, 6"), (7, f"s_add_u32 s43, s43, {FLAG_OFF}"),
         (7, "s_add_u32 s44, s40, 4096"), (8, "s_add_u32 s45, s41, 4096"),
         (8, f"v_lshlrev_b32 v{VX}, 4, v{VLANE}"),
         (9, f"v_mov_b32 v{T0}, 0"), (9, f"v_mov_b32 v{T1}, 1"),
         (10, f"v_and_b32 v{T2}, 15, v{VLANE}"), (10, f"v_lshlrev_b32 v{T2}, 11, v{T2}"),
         (11, f"v_bfe_u32 v{T3}, v{VLANE}, 4, 1"), (11, f"v_lshl_add_u32 v{T2}, v{T3}, 5, v{T2}"),
         (12, f"v_lshrrev_b32 v{T3}, 5, v{VLANE}"), (12, f"v_lshl_add_u32 v{T2}, v{T3}, 4, v{T2}"),
         (13, "s_lshl_b32 s52, s51, 16"), (13, "s_add_u32 s52, s52, s53"), (14, f"s_lshl_b32 s54, s{sKHALF}, 7"), (14, "s_add_u32 s52, s52, s54"),
         (15, f"v_add_u32 v{VO}, s52, v{T2}")]
    emit_phase(A, mf(1, R-1, 1), f)
    A("s_mov_b32 s12, s10")
    A("s_and_b32 s13, s11, 0xffff")
    A(f"s_mov_b32 s14, {OUT_BYTES}")
    A("s_mov_b32 s15, 0x00020000")
    A(f"s_cmp_eq_u32 s{sKHALF}, 0")
    A("s_nop 3")
    A("s_cbranch_scc1 L2_k0")
    def tail(send, keep, tag):
        for i in range(8):
            A(f"buffer_store_dwordx4 v[{send+4*i}:{send+4*i+3}], v{VX}, s[28:31], s{40 if i < 4 else 44} offen offset:{(i&3)*1024} sc1")
        stamp(A, opt, 7)
        A("s_waitcnt vmcnt(0)")
        stamp(A, opt, 10)
        A("s_mov_b64 exec, 1")
        A(f"buffer_store_dword v{T1}, v{T0}, s[28:31], s42 offen sc1")
        A.label(f"L2_poll{tag}")
        A(f"buffer_load_dword v{T2}, v{T0}, s[28:31], s43 offen sc1")
        A("s_waitcnt vmcnt(0)")
        A(f"v_readfirstlane_b32 s46, v{T2}")
        A("s_cmp_eq_u32 s46, 1")
        A(f"s_cbranch_scc1 L2_got{tag}")
        A("s_sleep 1")
        A(f"s_branch L2_poll{tag}")
        A.label(f"L2_got{tag}")
        stamp(A, opt, 11)
        A("s_mov_b64 exec, -1")
        for i in range(8):
            A(f"buffer_load_dwordx4 v[{64+4*i}:{64+4*i+3}], v{VX}, s[28:31], s{41 if i < 4 else 45} offen offset:{(i&3)*1024} sc1")
        for pr in range(2):
            A(f"s_waitcnt vmcnt({4 - 4*pr + 2*pr})")
            for t in range(4*pr, 4*pr+4):
                for i in range(2):
                    r = keep+4*t+2*i
                    A(f"v_pk_add_f32 v[{r}:{r+1}], v[{r}:{r+1}], v[{64+4*t+2*i}:{64+4*t+2*i+1}]")
            for mb in range(2):
                ta = keep + 4*((2*pr)*2+mb); tb = keep + 4*((2*pr+1)*2+mb)
                d = 96 + 4*(pr*2+mb)
                A(f"v_cvt_pk_bf16_f32 v{d}, v{ta}, v{ta+1}")
                A(f"v_cvt_pk_bf16_f32 v{d+1}, v{ta+2}, v{ta+3}")
                A(f"v_cvt_pk_bf16_f32 v{d+2}, v{tb}, v{tb+1}")
                A(f"v_cvt_pk_bf16_f32 v{d+3}, v{tb+2}, v{tb+3}")
            A(f"s_mov_b32 s{sT}, 32768")
            A("s_nop 0")
            for mb in range(2):
                d = 96 + 4*(pr*2+mb)
                A(f"v_permlane16_swap_b32 v{d}, v{d+2}")
                A(f"v_permlane16_swap_b32 v{d+1}, v{d+3}")
                A(f"buffer_store_dwordx4 v[{d}:{d+3}], v{VO}, s[12:15], {('s%d' % sT) if mb else 0} offen offset:{pr*64}")
    tail(0, 32, "a")
    A("s_branch L2_fin")
    A.label("L2_k0")
    tail(32, 0, "b")
    A.label("L2_fin")
    stamp(A, opt, 6)
    stamp_dump(A, opt, 1, sWAVE, T0)
    A.label("L2_end")
    A("s_endpgm")
    return name, NVG+R*16, NVG, LDS2

HEADER = """; Kernarg layout for this problem (56 bytes, ptrs only, base s[0:1]):
"""

def main():
    opt = dict(h_store_flags="", h_load_flags="", pf2_start=4,
               rd_gaps=[g for g in range(0, 44) if g % 4 != 3][:32],
               q0_dma=[3, 11, 19, 27, 35, 43],
               q1_dma=[3, 7, 19, 23, 27, 31, 35, 39, 43, 46, 49, 51, 53],
               q1f_dma=[1, 3, 5, 7, 10, 13, 16, 19, 23, 27, 31, 35, 39, 43, 45, 47, 49, 51, 53], pf_dist=5, npf=3, early_pf=0)
    for a in sys.argv[2:]:
        k, v = a.split("=", 1)
        opt[k] = eval(v)
    A = Asm()
    ks = [kernel_up(A, opt), kernel_down(A, opt)]
    out = HEADER
    for name, nv, ao, lds in ks:
        out += f"; @launch kernel={name} grid=(256,1,1) block=(256,1,1) lds={lds}\n"
    out += '.amdgcn_target "amdgcn-amd-amdhsa--gfx950"\n'
    out += A.text()
    out += '.section .rodata,"a"\n'
    for name, nv, ao, lds in ks:
        out += f""".p2align 6
.amdhsa_kernel {name}
  .amdhsa_next_free_vgpr {nv}
  .amdhsa_next_free_sgpr {100 if opt.get('stamps') else 64}
  .amdhsa_accum_offset {ao}
  .amdhsa_group_segment_fixed_size 0
  .amdhsa_kernarg_size 56
  .amdhsa_user_sgpr_count 2
  .amdhsa_user_sgpr_kernarg_segment_ptr 1
  .amdhsa_system_sgpr_workgroup_id_x 1
.end_amdhsa_kernel
"""
    open(sys.argv[1], "w").write(out)

main()
```

```python
import sys

class Asm:
    def __init__(self):
        self.lines = []
    def __call__(self, s):
        self.lines.append("    " + s)
    def label(self, s):
        self.lines.append(s + ":")
    def raw(self, s):
        self.lines.append(s)
    def text(self):
        return "\n".join(self.lines) + "\n"

DROP = set()
def emit_phase(A, mfmas, fillers):
    if 'rdw' in DROP: fillers = [(g, i) for g, i in fillers if not i.startswith("ds_read_b64_tr")]
    if 'rdx' in DROP: fillers = [(g, i) for g, i in fillers if not i.startswith("ds_read_b128")]
    if 'dma' in DROP: fillers = [(g, i) for g, i in fillers if not i.startswith("buffer_load")]
    g = {}
    for gap, ins in fillers:
        g.setdefault(gap, []).append(ins)
    if mfmas is None:
        for k in sorted(g):
            for ins in g[k]: A(ins)
        return
    for ins in g.get(-1, []): A(ins)
    for i, m in enumerate(mfmas):
        A(m)
        for ins in g.get(i, []): A(ins)
    assert max(g) < len(mfmas)

def place(items, gaps):
    assert len(items) <= len(gaps), (len(items), len(gaps))
    return list(zip(gaps, items))

def stamp(A, opt, i, real=False):
    if opt.get('stamps'):
        A(f"s_mem{'real' if real else ''}time s[{64+2*i}:{65+2*i}]")

def stamp_dump(A, opt, kidx, sWAVE, vt):
    if not opt.get('stamps'): return
    A("s_waitcnt vmcnt(0) lgkmcnt(0)")
    stamp(A, opt, 14)
    stamp(A, opt, 15, True)
    A("s_waitcnt lgkmcnt(0)")
    A("s_add_u32 s60, s16, 0x8000000")
    A("s_addc_u32 s61, s17, 0")
    A("s_and_b32 s61, s61, 0xffff")
    A("s_mov_b32 s62, 0x1000000")
    A("s_mov_b32 s63, 0x00020000")
    A("s_lshl_b32 s58, s2, 2")
    A(f"s_add_u32 s58, s58, s{sWAVE}")
    A(f"s_add_u32 s58, s58, {kidx*1024}")
    A("s_lshl_b32 s58, s58, 7")
    A("s_mov_b64 exec, 1")
    A(f"v_mov_b32 v{vt+1}, 0")
    for i in range(32):
        A(f"v_mov_b32 v{vt}, s{64+i}")
        A(f"buffer_store_dword v{vt}, v{vt+1}, s[60:63], s58 offen offset:{4*i}")
        A("s_nop 1")

X_BYTES = 2048*1024*2
W_BYTES = 1024*3584*2
OUT_BYTES = 2048*1024*2
H_MB_STRIDE = 224*1024
H_BYTES = 64*H_MB_STRIDE
FLAG_OFF = 32 << 20
XCH_OFF = 48 << 20
WBASE = 65536
WSLOT = 32768
LDS1 = 163840
MF = "v_mfma_f32_16x16x32_bf16"


HFLAG_OFF = 32 << 20
XFLAG_OFF = (32 << 20) + 65536
WS_RANGE = XCH_OFF + (8 << 20)

def kernel(A, opt):
    name = "standalone__glu_gated_swiglu__prompt_kernel"
    VOW, VOX, VWR, VXR = 224, 232, 240, 247
    VPX, VP2, VLANE = 249, 250, 251
    T0, T1, T2, T3 = 252, 253, 254, 255
    VPW = T3
    VTOK = T2
    WSET = [0, 56]; XSET = [112, 128]; NA = 144
    sWAVE, sKX, sKW, sMX, sMW, sDR, sCNT, sT, sXW, sWW = 32, 33, 34, 35, 36, 37, 38, 39, 40, 41
    sIW, sPF2, sC0, sSL, sRS = 42, 43, 44, 46, 47
    sIDX, sMT, sNT, sBLK = 48, 49, 50, 51
    sGW, sPX, sPW, sIX = 56, 57, 58, 59
    sC1 = 18
    A.raw(".text"); A.raw(f".globl {name}"); A.raw(".p2align 8"); A.raw(f".type {name},@function")
    A.label(name)
    A("s_cmp_ge_u32 s2, 256")
    A("s_cbranch_scc1 L_end")
    stamp(A, opt, 0); stamp(A, opt, 1, True)
    A("s_load_dwordx8 s[4:11], s[0:1], 0")
    A("s_load_dwordx4 s[60:63], s[0:1], 32")
    A("s_load_dwordx2 s[16:17], s[0:1], 48")
    A(f"v_lshrrev_b32 v{T0}, 6, v0")
    A(f"v_and_b32 v{VLANE}, 63, v0")
    A("s_and_b32 s3, s2, 7")
    A(f"v_readfirstlane_b32 s{sWAVE}, v{T0}")
    A(f"s_lshr_b32 s{sIDX}, s2, 3")
    A(f"s_and_b32 s{sMT}, s3, 1")
    A(f"s_lshl_b32 s{sMT}, s{sMT}, 2")
    A(f"s_and_b32 s{sNT}, s{sIDX}, 3")
    A(f"s_add_u32 s{sMT}, s{sMT}, s{sNT}")
    A(f"s_lshr_b32 s{sNT}, s3, 1")
    A(f"s_lshl_b32 s{sNT}, s{sNT}, 3")
    A(f"s_lshr_b32 s{sBLK}, s{sIDX}, 2")
    A(f"s_add_u32 s{sNT}, s{sNT}, s{sBLK}")
    A(f"v_lshrrev_b32 v{T0}, 4, v{VLANE}")
    A(f"v_bfe_u32 v{T1}, v{VLANE}, 1, 3")
    A(f"v_xor_b32 v{T1}, v{T1}, v{T0}")
    A(f"v_and_b32 v{T2}, 1, v{VLANE}")
    A(f"v_lshlrev_b32 v{T2}, 4, v{T2}")
    A("s_movk_i32 s55, 7168")
    A(f"v_mad_u32_u24 v{T2}, v{T0}, s55, v{T2}")
    A(f"s_and_b32 s52, s{sWAVE}, 1")
    A("s_mul_i32 s53, s52, 229376")
    A(f"s_mul_i32 s54, s{sNT}, 224")
    A("s_add_u32 s53, s53, s54")
    A(f"v_add_u32 v{T2}, s53, v{T2}")
    A("v_mov_b32 v0, 0x40000000")
    for pat in range(2):
        d = 1+pat
        if pat: A(f"v_xor_b32 v{T1}, 4, v{T1}")
        A(f"v_lshl_add_u32 v{d}, v{T1}, 5, v{T2}")
        A(f"v_cmp_eq_u32 vcc, 7, v{T1}")
        A("s_nop 1")
        A(f"v_cndmask_b32 v{d}, v{d}, v0, vcc")
    for i in range(8):
        A(f"v_add_u32 v{VOW+i}, {i*4*7168 - (i & 3)*1024}, v{1+((i>>1)&1)}")
    A(f"v_lshrrev_b32 v{T0}, 3, v{VLANE}")
    A(f"v_and_b32 v{T1}, 7, v{VLANE}")
    A(f"v_lshrrev_b32 v{T2}, 1, v{T0}")
    A(f"v_xor_b32 v{T1}, v{T1}, v{T2}")
    A(f"v_lshlrev_b32 v{T1}, 4, v{T1}")
    A(f"v_lshl_add_u32 v{T1}, v{T0}, 11, v{T1}")
    A(f"s_lshl_b32 s{sBLK}, s{sMT}, 2")
    A(f"s_add_u32 s{sBLK}, s{sBLK}, s{sWAVE}")
    A(f"s_lshl_b32 s53, s{sBLK}, 17")
    A(f"v_add_u32 v{T1}, s53, v{T1}")
    A(f"v_xor_b32 v{T2}, 64, v{T1}")
    for i in range(8):
        A(f"v_add_u32 v{VOX+i}, {i*16384 - (i & 3)*1024}, v{T2 if i & 1 else T1}")
    A(f"s_lshl_b32 s{sXW}, s{sWAVE}, 13")
    A(f"s_add_u32 s{sWW}, s{sXW}, {WBASE}")
    A("s_waitcnt lgkmcnt(0)")
    A(f"s_cmp_ge_u32 s{sWAVE}, 2")
    A("s_cselect_b32 s24, s8, s6")
    A("s_cselect_b32 s25, s9, s7")
    A("s_and_b32 s25, s25, 0xffff")
    A(f"s_mov_b32 s26, {W_BYTES}")
    A("s_mov_b32 s27, 0x00020000")
    A("s_mov_b32 s20, s4")
    A("s_and_b32 s21, s5, 0xffff")
    A(f"s_mov_b32 s22, {X_BYTES}")
    A("s_mov_b32 s23, 0x00020000")
    def dma_w(i): return f"buffer_load_dwordx4 v{VOW+i}, s[24:27], s{sKW} offen offset:{(i&3)*1024} lds"
    def dma_x(i): return f"buffer_load_dwordx4 v{VOX+i}, s[20:23], s{sKX} offen offset:{(i&3)*1024} lds"
    def issue_stage(st, which="wx"):
        if "w" in which:
            A(f"s_mov_b32 s{sKW}, {st*64*7168}")
            for h in range(2):
                A(f"s_add_u32 m0, s{sWW}, {st*WSLOT+h*4096}")
                A("s_nop 0")
                for i in range(4*h, 4*h+4): A(dma_w(i))
        if "x" in which:
            A(f"s_mov_b32 s{sKX}, {st*128}")
            for h in range(2):
                A(f"s_add_u32 m0, s{sXW}, {st*32768+h*4096}")
                A("s_nop 0")
                for i in range(4*h, 4*h+4): A(dma_x(i))
    issue_stage(0)
    stamp(A, opt, 2)
    A(f"v_and_b32 v{T0}, 15, v{VLANE}")
    A(f"v_lshrrev_b32 v{T1}, 4, v{VLANE}")
    A(f"v_bfe_u32 v{T2}, v{VLANE}, 1, 3")
    A(f"v_xor_b32 v{T2}, v{T2}, v{T1}")
    A(f"v_lshlrev_b32 v{T2}, 4, v{T2}")
    A(f"v_lshl_add_u32 v{T2}, v{T0}, 7, v{T2}")
    A(f"v_add_u32 v{VXR}, s{sXW}, v{T2}")
    A(f"v_xor_b32 v{VXR+1}, 64, v{VXR}")
    A(f"v_bfe_u32 v{T0}, v{VLANE}, 2, 3")
    A(f"v_bfe_u32 v{T2}, v{VLANE}, 2, 2")
    A(f"v_lshl_add_u32 v{T2}, v{T1}, 3, v{T2}")
    A(f"v_lshlrev_b32 v{T2}, 8, v{T2}")
    A(f"v_and_b32 v{T3}, 3, v{VLANE}")
    A(f"v_lshl_add_u32 v{T2}, v{T3}, 3, v{T2}")
    A(f"v_add_u32 v{T2}, {WBASE}, v{T2}")
    for fb in range(7):
        A(f"v_xor_b32 v{T3}, {fb}, v{T0}")
        A(f"v_lshl_add_u32 v{VWR+fb}, v{T3}, 5, v{T2}")
    A("s_mov_b32 s12, s10")
    A("s_and_b32 s13, s11, 0xffff")
    A(f"s_mov_b32 s14, {W_BYTES}")
    A("s_mov_b32 s15, 0x00020000")
    A(f"s_lshl_b32 s{sGW}, s2, 2")
    A(f"s_add_u32 s{sGW}, s{sGW}, s{sWAVE}")
    A(f"s_lshl_b32 s57, s{sIDX}, 2")
    A(f"s_add_u32 s57, s57, s{sWAVE}")
    A("s_lshl_b32 s57, s57, 14")
    A("s_and_b32 s58, s3, 1")
    A("s_lshl_b32 s58, s58, 21")
    A("s_add_u32 s57, s57, s58")
    A(f"v_lshrrev_b32 v{T0}, 1, v{VLANE}")
    A(f"v_lshlrev_b32 v{T0}, 11, v{T0}")
    A(f"v_and_b32 v{T1}, 1, v{VLANE}")
    A(f"v_lshl_add_u32 v{T0}, v{T1}, 6, v{T0}")
    A(f"v_add_u32 v{T0}, s57, v{T0}")
    A(f"v_cmp_gt_u32 vcc, 16, v{VLANE}")
    A(f"s_lshl_b32 s57, s{sIDX}, 1")
    A("s_add_u32 s57, s57, s52")
    A(f"v_cndmask_b32 v{VPX}, v0, v{T0}, vcc")
    A("s_mul_i32 s57, s57, 7168")
    A("s_lshr_b32 s58, s3, 1")
    A("s_mul_i32 s58, s58, 1792")
    A("s_add_u32 s57, s57, s58")
    A(f"v_lshlrev_b32 v{T1}, 6, v{VLANE}")
    A(f"v_add_u32 v{T0}, s57, v{T1}")
    A(f"v_cmp_gt_u32 vcc, 28, v{VLANE}")
    A(f"s_lshl_b32 s57, s{sGW}, 9")
    A(f"s_mov_b32 s{sPF2}, 0")
    A(f"v_cndmask_b32 v{VPW}, v0, v{T0}, vcc")
    A(f"v_add_u32 v{T0}, s57, v{T1}")
    A(f"v_cmp_gt_u32 vcc, 8, v{VLANE}")
    A("s_mov_b32 s28, s16")
    A("s_and_b32 s29, s17, 0xffff")
    A(f"v_cndmask_b32 v{VP2}, v0, v{T0}, vcc")
    A(f"s_mov_b32 s30, {WS_RANGE}")
    A("s_mov_b32 s31, 0x00020000")
    A(f"s_mov_b32 s{sC0}, 0xbfb8aa3b")
    A(f"s_mov_b32 s{sC0+1}, 0xbfb8aa3b")
    A(f"s_mov_b32 s{sC1}, 1.0")
    A(f"s_mov_b32 s{sC1+1}, 1.0")
    A("s_mov_b32 s52, s62")
    A("s_and_b32 s53, s63, 0xffff")
    A("s_mov_b32 s54, 4")
    A("s_mov_b32 s55, 0x00020000")
    for i in range(4): A(f"v_accvgpr_write_b32 a{NA-4+i}, 0")
    A(f"v_lshlrev_b32 v{T1}, 2, v{VLANE}")
    PFD = opt['pf_dist']
    def pf_x(so): return f"buffer_load_dword a{NA}, v{VPX}, s[20:23], {so} offen"
    def pf_w(so): return f"buffer_load_dword a{NA}, v{VPW}, s[24:27], {so} offen"
    def pf_2(): return f"buffer_load_dword a{NA}, v{VP2}, s[12:15], s{sPF2} offen"
    for t in range(14):
        A(f"v_mfma_f32_32x32x16_bf16 v[{16*t}:{16*t+15}], a[{NA-4}:{NA-1}], a[{NA-4}:{NA-1}], 0")
    def acc(fb, gu, mb): return 4*((fb*2+gu)*4+mb)
    def mfmas(st):
        out = []
        for fb in range(7):
            for gu in range(2):
                for mb in range(4):
                    c = acc(fb, gu, mb); w = WSET[st]+4*(fb*2+gu); x = XSET[st]+4*mb
                    out.append(f"{MF} v[{c}:{c+3}], a[{w}:{w+3}], a[{x}:{x+3}], v[{c}:{c+3}]")
        return out
    def wreads(st, ks):
        out = []
        for fb in range(7):
            for gu in range(2):
                w = WSET[st]+4*(fb*2+gu); off = ks*8192 + gu*16384
                out.append(f"ds_read_b64_tr_b16 a[{w}:{w+1}], v{VWR+fb} offset:{off}")
                out.append(f"ds_read_b64_tr_b16 a[{w+2}:{w+3}], v{VWR+fb} offset:{off+1024}")
        return out
    def xreads(st, ks):
        return [f"ds_read_b128 a[{XSET[st]+4*mb}:{XSET[st]+4*mb+3}], v{VXR+ks} offset:{mb*2048}" for mb in range(4)]
    NPF = 3
    NV = 16 + 2*NPF
    JIT = opt['jit']
    issue_stage(1, "w" if JIT else "wx")
    A(f"s_cmp_lg_u32 s{sGW}, 0")
    A("s_cbranch_scc1 L_notok")
    A("s_memrealtime s[62:63]")
    A("s_waitcnt lgkmcnt(0)")
    A("s_or_b32 s62, s62, 1")
    A(f"v_mov_b32 v{T0}, s62")
    A(f"buffer_store_dword v{T0}, v{T1}, s[52:55], 0 offen sc1")
    A.label("L_notok")
    A(f"s_mov_b32 s{sKW}, {2*64*7168}")
    A(f"s_mov_b32 s{sKX}, {128 if JIT else 256}")
    A(f"s_mov_b32 s{sIW}, {64*7168}")
    A(f"s_mov_b32 s{sIX}, 128")
    A(f"s_mov_b32 s{sPX}, {PFD*128}")
    A(f"s_mov_b32 s{sPW}, {PFD*64*7168}")
    A(f"s_mov_b32 s{sMX}, s{sXW}")
    A(f"s_add_u32 s{sMW}, s{sWW}, {2*WSLOT}")
    A(f"s_mov_b32 s{sRS}, 0")
    A(f"s_mov_b32 s{sSL}, {WSLOT}")
    A(f"s_mov_b32 s{sCNT}, 0")
    stamp(A, opt, 3)
    A(f"s_waitcnt vmcnt({8 if JIT else 16})")
    A("s_barrier")
    stamp(A, opt, 4); stamp(A, opt, 8, True)
    for r in xreads(0, 0) + wreads(0, 0): A(r)
    rg = opt['rd_gaps']
    def q1(first):
        pre = []
        if first and JIT:
            A(f"s_add_u32 m0, s{sXW}, 32768")
            A("s_nop 0")
            for i in range(4): A(dma_x(i))
            A(f"s_add_u32 m0, s{sXW}, {32768+4096}")
        A("s_waitcnt lgkmcnt(0)")
        f = place(xreads(1, 1) + wreads(1, 1), rg)
        if first:
            dg = list(opt['q1f_dma']); nw = 8
            if JIT:
                dg = list(opt['q1j_dma'])
                f += place([dma_x(i) for i in range(4, 8)], dg[:4]); f += [(dg[3], f"s_mov_b32 s{sKX}, 256")]
                dg = dg[4:]
            f += [(dg[0]-1, f"s_mov_b32 m0, s{sMW}"), (dg[4]-1, f"s_add_u32 m0, s{sMW}, 4096")]
        else:
            dg = opt['q1_dma']; nw = 2
        f += place([dma_w(i) for i in range(8-nw, 8)], dg[0:nw])
        xg = dg[nw:nw+8]; pg = dg[nw+8:]
        f += [(xg[0]-2, "s_waitcnt lgkmcnt(8)"), (xg[0]-1, f"s_mov_b32 m0, s{sMX}"), (xg[4]-1, f"s_add_u32 m0, s{sMX}, 4096")]
        assert sum(1 for g in rg if g <= xg[0]-2) >= 12 and xg[0]-1 > dg[nw-1] and xg[4]-1 > xg[3]
        f += place([dma_x(i) for i in range(8)], xg)
        f += place([pf_w(f"s{sPW}"), pf_x(f"s{sPX}"), pf_2()], pg)
        b = max(rg)+1
        w = dg[nw-1]
        f += [(w+1, f"s_add_u32 s{sKW}, s{sKW}, s{sIW}"),
              (w+1, f"s_lshl_b32 s{sT}, s{sRS}, 15"), (w+2, f"s_add_u32 s{sMW}, s{sWW}, s{sT}"),
              (w+2, f"s_add_u32 s{sRS}, s{sRS}, 1"), (w+3, f"s_cmp_eq_u32 s{sRS}, 3"),
              (w+3, f"s_cselect_b32 s{sDR}, {(-2*WSLOT) & 0xffffffff}, s{sSL}"), (w+3, f"s_cselect_b32 s{sRS}, 0, s{sRS}")]
        assert w+3 < b
        for k in range(7):
            f.append((b+k, f"v_add_u32 v{VWR+k}, s{sDR}, v{VWR+k}"))
        f += [(b+7, f"v_xor_b32 v{VXR}, 0x8000, v{VXR}"), (b+8, f"v_xor_b32 v{VXR+1}, 0x8000, v{VXR+1}")]
        e = xg[7]+1
        f += [(e, f"s_xor_b32 s{sMX}, s{sMX}, 0x8000"), (e, f"s_add_u32 s{sKX}, s{sKX}, s{sIX}")]
        e = max(dg)+1
        assert e+1 <= 55 and b+8 <= 55
        f += [(e, f"s_add_u32 s{sPW}, s{sPW}, {64*7168}"), (e, f"s_add_u32 s{sPF2}, s{sPF2}, 524288"), (e, f"s_add_u32 s{sPX}, s{sPX}, 128"),
              (e+1, f"s_cmp_ge_u32 s{sPX}, 2048"), (e+1, f"s_cselect_b32 s{sPX}, 0x40000000, s{sPX}"),
              (55, f"s_add_u32 s{sCNT}, s{sCNT}, 1"), (55, f"s_cmp_lt_u32 s{sCNT}, 14")]
        emit_phase(A, mfmas(0), f)
    q1(True)
    A(f"s_waitcnt vmcnt({16+NPF}) lgkmcnt(0)")
    A("s_branch L1_bar")
    A.raw(".p2align 6")
    A.label("L1_loop")
    A(f"s_waitcnt vmcnt({NV}) lgkmcnt(0)")
    A.label("L1_bar")
    A("s_barrier")
    if opt.get('pp'):
        A(f"s_mov_b32 m0, s{sCNT}"); A("s_nop 3"); A(f"v_writelane_b32 v{T0}, s96, m0")
        A("s_memtime s[96:97]")
    f = place(xreads(0, 0) + wreads(0, 0), rg)
    dg = opt['q0_dma']
    f += [(dg[0]-1, f"s_mov_b32 m0, s{sMW}"), (dg[4]-1, f"s_add_u32 m0, s{sMW}, 4096")]
    f += place([dma_w(i) for i in range(6)], dg)
    emit_phase(A, mfmas(1), f)
    q1(False)
    A("s_cbranch_scc1 L1_loop")
    A(f"s_cmp_eq_u32 s{sCNT}, 15")
    A("s_cbranch_scc1 L1_loop")
    A(f"s_cmp_eq_u32 s{sCNT}, 16")
    A("s_cbranch_scc1 L1_done")
    sKH2, sMT2, sNT2 = 4, 5, 6
    if opt.get('pp'): A(f"v_accvgpr_write_b32 a{NA+1}, v{T0}")
    A(f"s_and_b32 s{sKH2}, s3, 1")
    A(f"s_lshr_b32 s{sMT2}, s3, 1")
    A(f"s_lshl_b32 s{sMT2}, s{sMT2}, 2")
    A(f"s_and_b32 s{sNT2}, s{sIDX}, 3")
    A(f"s_add_u32 s{sMT2}, s{sMT2}, s{sNT2}")
    A(f"s_lshr_b32 s{sNT2}, s{sIDX}, 2")
    A(f"s_mul_i32 s7, s{sKH2}, {W_BYTES//2}")
    A("s_add_u32 s20, s10, s7")
    A("s_addc_u32 s21, s11, 0")
    A("s_and_b32 s21, s21, 0xffff")
    A(f"s_mov_b32 s22, {W_BYTES//2}")
    A("s_mov_b32 s23, 0x00020000")
    A("s_mov_b32 s24, s20")
    A("s_mov_b32 s25, s21")
    A(f"s_mov_b32 s26, {W_BYTES//2}")
    A("s_mov_b32 s27, 0x00020000")
    A(f"v_lshrrev_b32 v{T0}, 4, v{VLANE}")
    A(f"v_bfe_u32 v{VPX}, v{VLANE}, 1, 3")
    A(f"v_xor_b32 v{VPX}, v{VPX}, v{T0}")
    A(f"v_and_b32 v{T2}, 1, v{VLANE}")
    A(f"v_lshlrev_b32 v{T2}, 4, v{T2}")
    A(f"v_lshl_add_u32 v{T2}, v{T0}, 11, v{T2}")
    A(f"v_lshl_add_u32 v{T2}, v{VPX}, 5, v{T2}")
    A(f"s_lshl_b32 s7, s{sWAVE}, 16")
    A(f"s_lshl_b32 s8, s{sNT2}, 8")
    A("s_add_u32 s7, s7, s8")
    A(f"v_add_u32 v{T2}, s7, v{T2}")
    A(f"v_xor_b32 v{T0}, 128, v{T2}")
    for i in range(8):
        A(f"v_add_u32 v{VOW+i}, {i*8192 - (i & 3)*1024}, v{T0 if (i >> 1) & 1 else T2}")
        A(f"v_mov_b32 v{VOX+i}, v{VOW+i}")
    A(f"v_mov_b32 v{VPX}, 0")
    A(f"s_mov_b32 s{sKW}, 0")
    A(f"s_mov_b32 s{sKX}, 262144")
    A(f"s_mov_b32 s{sIW}, 524288")
    A(f"s_mov_b32 s{sIX}, 524288")
    if opt.get('pp'): A(f"v_accvgpr_read_b32 v{T0}, a{NA+1}")
    A("s_branch L1_loop")
    A.label("L1_done")
    stamp(A, opt, 5); stamp(A, opt, 9, True)
    A(f"buffer_load_dword v{VTOK}, v{T1}, s[52:55], 0 offen sc1")
    A("s_waitcnt lgkmcnt(0)")
    VH = VWR
    f = [(0, f"s_lshl_b32 s7, s{sBLK}, 1"), (1, f"s_mul_i32 s7, s7, {H_MB_STRIDE}"), (2, f"s_mul_i32 s8, s{sNT}, 7168"),
         (3, "s_add_u32 s7, s7, s8"), (4, f"v_lshlrev_b32 v{VH}, 4, v{VLANE}"), (5, f"v_add_u32 v{VH}, s7, v{VH}")]
    emit_phase(A, mfmas(1), f)
    for fb in range(7):
        for p in range(2):
            g = acc(fb, 0, 2*p); u = acc(fb, 1, 2*p)
            for i in range(4): A(f"v_pk_mul_f32 v[{u+2*i}:{u+2*i+1}], v[{g+2*i}:{g+2*i+1}], v[{u+2*i}:{u+2*i+1}]")
            for i in range(4): A(f"v_pk_mul_f32 v[{g+2*i}:{g+2*i+1}], v[{g+2*i}:{g+2*i+1}], s[{sC0}:{sC0+1}]")
            for i in range(8): A(f"v_exp_f32 v{g+i}, v{g+i}")
            for i in range(4): A(f"v_pk_add_f32 v[{g+2*i}:{g+2*i+1}], v[{g+2*i}:{g+2*i+1}], s[{sC1}:{sC1+1}]")
            for i in range(8): A(f"v_rcp_f32 v{g+i}, v{g+i}")
            for i in range(4): A(f"v_pk_mul_f32 v[{u+2*i}:{u+2*i+1}], v[{g+2*i}:{g+2*i+1}], v[{u+2*i}:{u+2*i+1}]")
            for i in range(4): A(f"v_cvt_pk_bf16_f32 v{g+i}, v{u+2*i}, v{u+2*i+1}")
            A(f"s_mov_b32 s{sT}, {p*H_MB_STRIDE + (fb//4)*4096}")
            A("s_nop 0")
            A(f"v_permlane16_swap_b32 v{g}, v{g+2}")
            A(f"v_permlane16_swap_b32 v{g+1}, v{g+3}")
            A(f"buffer_store_dwordx4 v[{g}:{g+3}], v{VH}, s[28:31], s{sT} offen offset:{(fb%4)*1024} sc1")
    stamp(A, opt, 6)
    R = 8
    ACC = 0; WS = [64, 96]; VWD = 128; VRD = 132
    VHL, VO, VX, VF = 148, 149, 150, 151
    U0, U1, U2, U3 = 152, 153, 154, 155
    sKW2, sKH, sM, sTOK, sMB = 33, 34, 35, 36, 37
    REG = [98304, 0, 131072, 32768]
    def slot_addr(k): return REG[k >> 1] + (k & 1)*16384
    A(f"s_lshl_b32 s7, s{sWAVE}, 15")
    for i in range(4): A(f"v_subrev_u32 v{VWD+i}, s7, v{VOW+i}")
    A(f"v_and_b32 v{U0}, 15, v{VLANE}")
    A(f"v_bfe_u32 v{U1}, v{VLANE}, 4, 1")
    A(f"v_lshl_add_u32 v{U0}, v{U1}, 5, v{U0}")
    A(f"v_lshlrev_b32 v{U0}, 4, v{U0}")
    A(f"v_lshrrev_b32 v{U1}, 5, v{VLANE}")
    A(f"v_lshl_add_u32 v{VHL}, v{U1}, 10, v{U0}")
    A(f"s_lshl_b32 s{sM}, s{sWAVE}, 12")
    A(f"s_lshl_b32 s{sMB}, s{sMT2}, 2")
    A(f"s_add_u32 s{sMB}, s{sMB}, s{sWAVE}")
    A(f"s_mul_i32 s7, s{sMB}, {H_MB_STRIDE}")
    A(f"s_mul_i32 s8, s{sKH2}, {H_MB_STRIDE//2}")
    A("s_add_u32 s7, s7, s8")
    A("s_add_u32 s24, s16, s7")
    A("s_addc_u32 s25, s17, 0")
    A("s_and_b32 s25, s25, 0xffff")
    A(f"s_mov_b32 s26, {H_MB_STRIDE//2}")
    A("s_mov_b32 s27, 0x00020000")
    A(f"v_lshrrev_b32 v{U1}, 4, v{VLANE}")
    A(f"v_bfe_u32 v{U0}, v{VLANE}, 2, 3")
    A(f"v_bfe_u32 v{U2}, v{VLANE}, 2, 2")
    A(f"v_lshl_add_u32 v{U2}, v{U1}, 3, v{U2}")
    A(f"v_lshlrev_b32 v{U2}, 8, v{U2}")
    A(f"v_and_b32 v{U3}, 3, v{VLANE}")
    A(f"v_lshl_add_u32 v{U2}, v{U3}, 3, v{U2}")
    for nb in range(8):
        A(f"v_xor_b32 v{U3}, {nb}, v{U0}")
        A(f"v_lshl_add_u32 v{VRD+nb}, v{U3}, 5, v{U2}")
        A(f"v_add_u32 v{VRD+8+nb}, 98304, v{VRD+nb}")
    def hreg(slot, ks, mb): return slot*16 + ks*8 + mb*4
    for i in range(4): A(f"v_mov_b32 v{WS[1]+i}, 0")
    for i in range(8): A(f"v_accvgpr_write_b32 a{hreg(R-1,1,0)+i}, 0")
    for t in range(2): A(f"v_mfma_f32_32x32x16_bf16 v[{WS[1]+16*t}:{WS[1]+16*t+15}], v[{WS[1]}:{WS[1]+3}], v[{WS[1]}:{WS[1]+3}], 0") if t == 1 else None
    for t in range(4): A(f"v_mfma_f32_32x32x16_bf16 v[{16*t}:{16*t+15}], v[{WS[1]}:{WS[1]+3}], v[{WS[1]}:{WS[1]+3}], 0")
    for i in range(4, 16): A(f"v_mov_b32 v{WS[1]+i}, 0")
    A(f"s_lshr_b32 s7, s{sNT}, 4")
    A(f"s_lshl_b32 s8, s{sBLK}, 1")
    A("s_add_u32 s7, s7, s8")
    A("s_lshl_b32 s7, s7, 7")
    A(f"s_and_b32 s8, s{sNT}, 15")
    A("s_lshl_b32 s8, s8, 2")
    A("s_add_u32 s7, s7, s8")
    A(f"s_add_u32 s7, s7, {HFLAG_OFF}")
    A(f"s_and_b32 s8, s{sMB}, 62")
    A(f"s_add_u32 s8, s8, s{sKH2}")
    A("s_lshl_b32 s8, s8, 7")
    A(f"s_add_u32 s8, s8, {HFLAG_OFF}")
    A(f"s_mov_b32 s{sKW2}, {7*131072}")
    A(f"s_mov_b32 s{sKH}, 0")
    A(f"s_mov_b32 s{sCNT}, 0")
    if opt.get('pp'): A("s_mov_b32 s98, 16")
    A("s_mov_b32 s9, 0x40000")
    A("s_waitcnt vmcnt(0)")
    stamp(A, opt, 7)
    A.label("L_tok")
    A(f"v_readfirstlane_b32 s{sTOK}, v{VTOK}")
    A("s_nop 0")
    A(f"s_cmp_lg_u32 s{sTOK}, 0")
    A("s_cbranch_scc1 L_tok_ok")
    A("s_sleep 2")
    A(f"buffer_load_dword v{VTOK}, v{T1}, s[52:55], 0 offen sc1")
    A("s_waitcnt vmcnt(0)")
    A("s_sub_u32 s9, s9, 1")
    A("s_cbranch_scc0 L_tok")
    A.label("L_tok_ok")
    A("s_mov_b32 s9, 0x40000")
    A(f"v_mov_b32 v{VF}, s{sTOK}")
    A("s_mov_b64 exec, 1")
    A(f"buffer_store_dword v{VF}, v{T1}, s[28:31], s7 offen sc1")
    A("s_mov_b64 exec, 0xffff")
    A.label("L_hpoll")
    A(f"buffer_load_dword v{U0}, v{T1}, s[28:31], s8 offen sc1")
    A("s_waitcnt vmcnt(0)")
    A(f"v_cmp_ne_u32 vcc, s{sTOK}, v{U0}")
    A("s_nop 4")
    A("s_cbranch_vccz L_hgo")
    A("s_sleep 1")
    A("s_sub_u32 s9, s9, 1")
    A("s_cbranch_scc0 L_hpoll")
    A.label("L_hgo")
    A("s_mov_b32 s9, 0x40000")
    A("s_mov_b64 exec, -1")
    stamp(A, opt, 10)
    def dma(i): return f"buffer_load_dwordx4 v{VWD+i}, s[20:23], s{sKW2} offen offset:{i*1024} lds"
    def hload(slot, ks, mb):
        a = hreg(slot, ks, mb)
        return f"buffer_load_dwordx4 a[{a}:{a+3}], v{VHL}, s[24:27], s{sKH} offen offset:{ks*2048+mb*256} sc1"
    HP = opt['h_pre']
    for st in range(HP):
        for ks in range(2):
            for mb in range(2): A(hload(st, ks, mb))
        A(f"s_add_u32 s{sKH}, s{sKH}, 4096")
    def mf(st, slot, ks):
        out = []
        for nb in range(8):
            for mb in range(2):
                c = ACC+4*(nb*2+mb); w = WS[st]+4*nb; h = hreg(slot, ks, mb)
                out.append(f"{MF} v[{c}:{c+3}], v[{w}:{w+3}], a[{h}:{h+3}], v[{c}:{c+3}]")
        return out
    def rd(st, slot, ks):
        out = []
        sa = slot_addr(slot)
        for nb in range(8):
            w = WS[st]+4*nb
            base = VRD + nb + (8 if sa >= 98304 else 0)
            off = (sa - 98304 if sa >= 98304 else sa) + ks*8192
            out.append(f"ds_read_b64_tr_b16 v[{w}:{w+1}], v{base} offset:{off}")
            out.append(f"ds_read_b64_tr_b16 v[{w+2}:{w+3}], v{base} offset:{off+1024}")
        return out
    def period(u, firstpass, last):
        pm = (u-1) % R; hs = (u+HP) % R
        A(f"s_waitcnt vmcnt({opt['w2_cnt']}) lgkmcnt(0)")
        A("s_barrier")
        if opt.get('pp'):
            A("s_mov_b32 m0, s98"); A("s_nop 3"); A(f"v_writelane_b32 v{T0}, s96, m0")
            A("s_memtime s[96:97]")
            A("s_add_u32 s98, s98, 1")
        A(f"s_add_u32 m0, s{sM}, {slot_addr(pm)}")
        f = [(i//2 + (i//2)//2, r) for i, r in enumerate(rd(0, u, 0))]
        f += [(2, dma(0)), (5, dma(1)), (8, dma(2)), (11, dma(3))]
        if HP < 7: f += [(12, hload(hs, 0, 0)), (13, hload(hs, 0, 1)), (14, hload(hs, 1, 0)), (15, hload(hs, 1, 1))]
        else: f += [(13, hload(hs, 0, 0)), (15, hload(hs, 0, 1))]
        emit_phase(A, mf(1, pm, 1), f)
        nq0 = 8 if HP < 7 else 6
        first = (HP-1-u)*4 + 8*u + nq0 if (u < HP and firstpass) else 10**9
        steady = 8*(HP-1) + nq0
        A(f"s_waitcnt vmcnt({min(first, steady, 63)}) lgkmcnt(0)")
        f = [(i//2 + (i//2)//2, r) for i, r in enumerate(rd(1, u, 1))]
        if HP == 7: f += [(2, hload(hs, 1, 0)), (8, hload(hs, 1, 1))]
        f += [(12, f"s_add_u32 s{sKW2}, s{sKW2}, 131072"), (13, f"s_add_u32 s{sKH}, s{sKH}, 4096")]
        if last:
            f += [(14, f"s_add_u32 s{sCNT}, s{sCNT}, 1"), (15, f"s_cmp_lt_u32 s{sCNT}, 3")]
        emit_phase(A, mf(0, u, 0), f)
    for u in range(4): period(u, True, False)
    A.raw(".p2align 6")
    A.label("L2_loop")
    for u in [4, 5, 6, 7, 0, 1, 2, 3]: period(u, u >= 4, u == 3)
    A("s_cbranch_scc1 L2_loop")
    A.label("L2_done")
    stamp(A, opt, 11)
    A("s_waitcnt lgkmcnt(0)")
    f = [(0, f"s_xor_b32 s57, s{sGW}, 4"),
         (3, f"s_lshl_b32 s40, s{sGW}, 13"), (4, f"s_add_u32 s40, s40, {XCH_OFF}"),
         (4, "s_lshl_b32 s41, s57, 13"), (5, f"s_add_u32 s41, s41, {XCH_OFF}"),
         (5, f"s_lshl_b32 s42, s{sGW}, 6"), (6, f"s_add_u32 s42, s42, {XFLAG_OFF}"),
         (6, "s_lshl_b32 s43, s57, 6"), (7, f"s_add_u32 s43, s43, {XFLAG_OFF}"),
         (7, "s_add_u32 s44, s40, 4096"), (8, "s_add_u32 s45, s41, 4096"),
         (8, f"v_lshlrev_b32 v{VX}, 4, v{VLANE}"),
         (10, f"v_and_b32 v{U2}, 15, v{VLANE}"), (10, f"v_lshlrev_b32 v{U2}, 11, v{U2}"),
         (11, f"v_bfe_u32 v{U3}, v{VLANE}, 4, 1"), (11, f"v_lshl_add_u32 v{U2}, v{U3}, 5, v{U2}"),
         (12, f"v_lshrrev_b32 v{U3}, 5, v{VLANE}"), (12, f"v_lshl_add_u32 v{U2}, v{U3}, 4, v{U2}"),
         (1, f"s_lshl_b32 s7, s{sMB}, 16"), (1, f"s_lshl_b32 s8, s{sNT2}, 8"), (2, "s_add_u32 s7, s7, s8"),
         (2, f"s_lshl_b32 s8, s{sKH2}, 7"), (3, "s_add_u32 s7, s7, s8"),
         (13, f"v_add_u32 v{VO}, s7, v{U2}")]
    emit_phase(A, mf(1, 3, 1), f)
    A("s_mov_b32 s12, s60")
    A("s_and_b32 s13, s61, 0xffff")
    A(f"s_mov_b32 s14, {OUT_BYTES}")
    A("s_mov_b32 s15, 0x00020000")
    A(f"s_cmp_eq_u32 s{sKH2}, 0")
    A("s_nop 3")
    A("s_cbranch_scc1 L2_k0")
    def tail(send, keep, tag):
        for i in range(8):
            A(f"buffer_store_dwordx4 v[{send+4*i}:{send+4*i+3}], v{VX}, s[28:31], s{40 if i < 4 else 44} offen offset:{(i&3)*1024} sc1")
        A("s_waitcnt vmcnt(0)")
        A("s_mov_b64 exec, 1")
        A(f"buffer_store_dword v{VF}, v{T1}, s[28:31], s42 offen sc1")
        A.label(f"L2_poll{tag}")
        A(f"buffer_load_dword v{U0}, v{T1}, s[28:31], s43 offen sc1")
        A("s_waitcnt vmcnt(0)")
        A(f"v_readfirstlane_b32 s46, v{U0}")
        A("s_nop 0")
        A(f"s_cmp_eq_u32 s46, s{sTOK}")
        A(f"s_cbranch_scc1 L2_got{tag}")
        A("s_sleep 1")
        A("s_sub_u32 s9, s9, 1")
        A(f"s_cbranch_scc0 L2_poll{tag}")
        A.label(f"L2_got{tag}")
        A("s_mov_b64 exec, -1")
        stamp(A, opt, 12)
        for i in range(8):
            A(f"buffer_load_dwordx4 v[{64+4*i}:{64+4*i+3}], v{VX}, s[28:31], s{41 if i < 4 else 45} offen offset:{(i&3)*1024} sc1")
        for pr in range(2):
            A(f"s_waitcnt vmcnt({4 - 4*pr + 2*pr})")
            for t in range(4*pr, 4*pr+4):
                for i in range(2):
                    r = keep+4*t+2*i
                    A(f"v_pk_add_f32 v[{r}:{r+1}], v[{r}:{r+1}], v[{64+4*t+2*i}:{64+4*t+2*i+1}]")
            for mb in range(2):
                ta = keep + 4*((2*pr)*2+mb); tb = keep + 4*((2*pr+1)*2+mb)
                d = 96 + 4*(pr*2+mb)
                A(f"v_cvt_pk_bf16_f32 v{d}, v{ta}, v{ta+1}")
                A(f"v_cvt_pk_bf16_f32 v{d+1}, v{ta+2}, v{ta+3}")
                A(f"v_cvt_pk_bf16_f32 v{d+2}, v{tb}, v{tb+1}")
                A(f"v_cvt_pk_bf16_f32 v{d+3}, v{tb+2}, v{tb+3}")
            A(f"s_mov_b32 s{sT}, 32768")
            A("s_nop 0")
            for mb in range(2):
                d = 96 + 4*(pr*2+mb)
                A(f"v_permlane16_swap_b32 v{d}, v{d+2}")
                A(f"v_permlane16_swap_b32 v{d+1}, v{d+3}")
                A(f"buffer_store_dwordx4 v[{d}:{d+3}], v{VO}, s[12:15], {('s%d' % sT) if mb else 0} offen offset:{pr*64}")
    tail(0, 32, "a")
    A("s_branch L2_fin")
    A.label("L2_k0")
    tail(32, 0, "b")
    A.label("L2_fin")
    stamp(A, opt, 13)
    if opt.get('pp'):
        A("s_mov_b32 m0, s98"); A("s_nop 3"); A(f"v_writelane_b32 v{T0}, s96, m0")
        A("s_add_u32 s60, s16, 0x8200000")
        A("s_addc_u32 s61, s17, 0")
        A("s_and_b32 s61, s61, 0xffff")
        A("s_mov_b32 s62, 0x1000000")
        A("s_mov_b32 s63, 0x00020000")
        A(f"s_lshl_b32 s58, s{sGW}, 8")
        A(f"buffer_store_dword v{T0}, v{T1}, s[60:63], s58 offen")
    stamp_dump(A, opt, 0, sWAVE, U0)
    A.label("L_end")
    A("s_endpgm")
    return name, 256+NA+2, 256, LDS1

HEADER = """; Kernarg layout for this problem (56 bytes, ptrs only, base s[0:1]):
"""

def main():
    opt = dict(rd_gaps=[g for g in range(0, 44) if g % 4 != 3][:32],
               q0_dma=[3, 11, 19, 27, 35, 43],
               q1_dma=[3, 7, 19, 23, 27, 31, 35, 39, 43, 46, 49, 51, 53],
               q1f_dma=[1, 3, 5, 7, 10, 13, 16, 19, 23, 27, 31, 35, 39, 43, 45, 47, 49, 51, 53],
               q1j_dma=[0, 2, 4, 6, 9, 11, 13, 15, 18, 20, 22, 24, 28, 30, 32, 34, 37, 40, 43, 46, 49, 51, 53],
               pf_dist=5, jit=1, h_pre=4, w2_cnt=40)
    for a in sys.argv[2:]:
        k, v = a.split("=", 1)
        opt[k] = eval(v)
    A = Asm()
    name, nv, ao, lds = kernel(A, opt)
    out = HEADER
    out += f"; @launch grid=(256,1,1) block=(256,1,1) lds={lds}\n"
    out += '.amdgcn_target "amdgcn-amd-amdhsa--gfx950"\n'
    out += A.text()
    out += '.section .rodata,"a"\n'
    out += f""".p2align 6
.amdhsa_kernel {name}
  .amdhsa_next_free_vgpr {nv}
  .amdhsa_next_free_sgpr {100 if opt.get('stamps') else 64}
  .amdhsa_accum_offset {ao}
  .amdhsa_group_segment_fixed_size 0
  .amdhsa_kernarg_size 56
  .amdhsa_user_sgpr_count 2
  .amdhsa_user_sgpr_kernarg_segment_ptr 1
  .amdhsa_system_sgpr_workgroup_id_x 1
.end_amdhsa_kernel
"""
    open(sys.argv[1], "w").write(out)

main()
```

```python
import sys

class Asm:
    def __init__(self):
        self.lines = []
    def __call__(self, s):
        self.lines.append("    " + s)
    def label(self, s):
        self.lines.append(s + ":")
    def raw(self, s):
        self.lines.append(s)
    def text(self):
        return "\n".join(self.lines) + "\n"

DROP = set()
def emit_phase(A, mfmas, fillers):
    if 'rdw' in DROP: fillers = [(g, i) for g, i in fillers if not i.startswith("ds_read_b64_tr")]
    if 'rdx' in DROP: fillers = [(g, i) for g, i in fillers if not i.startswith("ds_read_b128")]
    if 'dma' in DROP: fillers = [(g, i) for g, i in fillers if not i.startswith("buffer_load")]
    g = {}
    for gap, ins in fillers:
        g.setdefault(gap, []).append(ins)
    if mfmas is None:
        for k in sorted(g):
            for ins in g[k]: A(ins)
        return
    for ins in g.get(-1, []): A(ins)
    for i, m in enumerate(mfmas):
        A(m)
        for ins in g.get(i, []): A(ins)
    assert max(g) < len(mfmas)

def place(items, gaps):
    assert len(items) <= len(gaps), (len(items), len(gaps))
    return list(zip(gaps, items))

def stamp(A, opt, i, real=False):
    if opt.get('stamps'):
        A(f"s_mem{'real' if real else ''}time s[{64+2*i}:{65+2*i}]")

def stamp_dump(A, opt, kidx, sWAVE, vt):
    if not opt.get('stamps'): return
    A("s_waitcnt vmcnt(0) lgkmcnt(0)")
    stamp(A, opt, 14)
    stamp(A, opt, 15, True)
    A("s_waitcnt lgkmcnt(0)")
    A("s_add_u32 s60, s16, 0x8000000")
    A("s_addc_u32 s61, s17, 0")
    A("s_and_b32 s61, s61, 0xffff")
    A("s_mov_b32 s62, 0x1000000")
    A("s_mov_b32 s63, 0x00020000")
    A("s_lshl_b32 s58, s2, 2")
    A(f"s_add_u32 s58, s58, s{sWAVE}")
    A(f"s_add_u32 s58, s58, {kidx*1024}")
    A("s_lshl_b32 s58, s58, 7")
    A("s_mov_b64 exec, 1")
    A(f"v_mov_b32 v{vt+1}, 0")
    for i in range(32):
        A(f"v_mov_b32 v{vt}, s{64+i}")
        A(f"buffer_store_dword v{vt}, v{vt+1}, s[60:63], s58 offen offset:{4*i}")
        A("s_nop 1")

X_BYTES = 2048*1024*2
W_BYTES = 1024*3584*2
OUT_BYTES = 2048*1024*2
H_MB_STRIDE = 224*1024
H_BYTES = 64*H_MB_STRIDE
FLAG_OFF = 32 << 20
XCH_OFF = 48 << 20
WBASE = 65536
WSLOT = 32768
LDS1 = 163840
MF = "v_mfma_f32_16x16x32_bf16"


HFLAG_OFF = 32 << 20
XFLAG_OFF = (32 << 20) + 65536
WS_RANGE = XCH_OFF + (8 << 20)

def kernel(A, opt):
    name = "standalone__glu_gated_swiglu__prompt_kernel"
    VOW, VOX, VWR, VXR = 224, 232, 240, 247
    VPX, VP2, VLANE = 249, 250, 251
    T0, T1, T2, T3 = 252, 253, 254, 255
    VPW = T3
    VTOK = T2
    WSET = [0, 56]; XSET = [112, 128]; NA = 144
    sWAVE, sKX, sKW, sMX, sMW, sDR, sCNT, sT, sXW, sWW = 32, 33, 34, 35, 36, 37, 38, 39, 40, 41
    sIW, sPF2, sC0, sSL, sRS = 42, 43, 44, 46, 47
    sIDX, sMT, sNT, sBLK = 48, 49, 50, 51
    sGW, sPX, sPW, sIX = 56, 57, 58, 59
    sC1 = 18
    sXB, sXS = 62, 63
    A.raw(".text"); A.raw(f".globl {name}"); A.raw(".p2align 8"); A.raw(f".type {name},@function")
    A.label(name)
    A("s_cmp_ge_u32 s2, 256")
    A("s_cbranch_scc1 L_end")
    stamp(A, opt, 0); stamp(A, opt, 1, True)
    A("s_load_dwordx8 s[4:11], s[0:1], 0")
    A("s_load_dwordx4 s[60:63], s[0:1], 32")
    A("s_load_dwordx2 s[16:17], s[0:1], 48")
    A(f"v_lshrrev_b32 v{T0}, 6, v0")
    A(f"v_and_b32 v{VLANE}, 63, v0")
    A("s_and_b32 s3, s2, 7")
    A(f"v_readfirstlane_b32 s{sWAVE}, v{T0}")
    A(f"s_lshr_b32 s{sIDX}, s2, 3")
    A(f"s_and_b32 s{sMT}, s3, 1")
    A(f"s_lshl_b32 s{sMT}, s{sMT}, 2")
    A(f"s_and_b32 s{sNT}, s{sIDX}, 3")
    A(f"s_add_u32 s{sMT}, s{sMT}, s{sNT}")
    A(f"s_lshr_b32 s{sNT}, s3, 1")
    A(f"s_lshl_b32 s{sNT}, s{sNT}, 3")
    A(f"s_lshr_b32 s{sBLK}, s{sIDX}, 2")
    A(f"s_add_u32 s{sNT}, s{sNT}, s{sBLK}")
    A(f"v_lshrrev_b32 v{T0}, 4, v{VLANE}")
    A(f"v_bfe_u32 v{T1}, v{VLANE}, 1, 3")
    A(f"v_xor_b32 v{T1}, v{T1}, v{T0}")
    A(f"v_and_b32 v{T2}, 1, v{VLANE}")
    A(f"v_lshlrev_b32 v{T2}, 4, v{T2}")
    A("s_movk_i32 s55, 7168")
    A(f"v_mad_u32_u24 v{T2}, v{T0}, s55, v{T2}")
    A(f"s_and_b32 s52, s{sWAVE}, 1")
    A("s_mul_i32 s53, s52, 229376")
    A(f"s_mul_i32 s54, s{sNT}, 224")
    A("s_add_u32 s53, s53, s54")
    A(f"v_add_u32 v{T2}, s53, v{T2}")
    A("v_mov_b32 v0, 0x40000000")
    for pat in range(2):
        d = 1+pat
        if pat: A(f"v_xor_b32 v{T1}, 4, v{T1}")
        A(f"v_lshl_add_u32 v{d}, v{T1}, 5, v{T2}")
        A(f"v_cmp_eq_u32 vcc, 7, v{T1}")
        A("s_nop 1")
        A(f"v_cndmask_b32 v{d}, v{d}, v0, vcc")
    for i in range(8):
        A(f"v_add_u32 v{VOW+i}, {i*4*7168 - (i & 3)*1024}, v{1+((i>>1)&1)}")
    A(f"v_lshrrev_b32 v{T0}, 3, v{VLANE}")
    A(f"v_and_b32 v{T1}, 7, v{VLANE}")
    A(f"v_lshrrev_b32 v{T2}, 1, v{T0}")
    A(f"v_xor_b32 v{T1}, v{T1}, v{T2}")
    A(f"v_lshlrev_b32 v{T1}, 4, v{T1}")
    A(f"v_lshl_add_u32 v{T1}, v{T0}, 11, v{T1}")
    A(f"s_lshl_b32 s{sBLK}, s{sMT}, 2")
    A(f"s_add_u32 s{sBLK}, s{sBLK}, s{sWAVE}")
    A(f"s_lshl_b32 s53, s{sBLK}, 17")
    A(f"v_add_u32 v{T1}, s53, v{T1}")
    A(f"v_xor_b32 v{T2}, 64, v{T1}")
    for i in range(8):
        A(f"v_add_u32 v{VOX+i}, {i*16384 - (i & 3)*1024}, v{T2 if i & 1 else T1}")
    A(f"s_lshl_b32 s{sXW}, s{sWAVE}, 13")
    A(f"s_add_u32 s{sWW}, s{sXW}, {WBASE}")
    EP = opt['ep']
    if EP:
        A(f"s_lshl_b32 s57, s{sIDX}, 1")
        A("s_add_u32 s57, s57, s52")
        A("s_mul_i32 s57, s57, 7168")
        A("s_lshr_b32 s58, s3, 1")
        A("s_mul_i32 s58, s58, 1792")
        A("s_add_u32 s57, s57, s58")
        A(f"s_add_u32 s57, s57, {EP[2]*458752}")
        if EP[0] == 16:
            A(f"v_lshlrev_b32 v4, 4, v{VLANE}")
            A("v_add_u32 v4, s57, v4")
            A(f"v_cmp_gt_u32 vcc, 48, v{VLANE}")
            A("s_nop 1")
            A("v_cndmask_b32 v5, v0, v4, vcc")
        else:
            n = 1792 // EP[0]; sh = 6 if EP[0] == 64 else 7
            A(f"v_mov_b32 v4, v{VLANE}")
            A("v_mov_b32 v5, 0")
            for r in range(56 // n - 1):
                A(f"v_cmp_le_u32 vcc, {n}, v4")
                A(f"v_subrev_u32 v6, {n}, v4")
                A(f"v_add_u32 v7, 458752, v5")
                A("v_cndmask_b32 v4, v4, v6, vcc")
                A("v_cndmask_b32 v5, v5, v7, vcc")
            A(f"v_lshl_add_u32 v4, v4, {sh}, v5")
            A("v_add_u32 v4, s57, v4")
            A(f"v_cmp_gt_u32 vcc, 56, v{VLANE}")
            A("s_nop 1")
            A("v_cndmask_b32 v4, v0, v4, vcc")
    def early_pf():
        n = 0
        if EP[0] == 16:
            for st in range(EP[3]):
                A(f"s_mov_b32 s57, {st*458752}")
                A(f"buffer_load_dwordx4 a[{NA+8}:{NA+11}], v4, s[24:27], s57 offen")
                A(f"buffer_load_dwordx4 a[{NA+8}:{NA+11}], v5, s[24:27], s57 offen offset:1024")
                n += 2
        else:
            per = 56 // (1792 // EP[0])
            for st in range(0, EP[3], per):
                A(f"s_mov_b32 s57, {st*458752}")
                A(f"buffer_load_dword a{NA+8}, v4, s[24:27], s57 offen{opt['pol_pw']}")
                n += 1
        return n
    A("s_waitcnt lgkmcnt(0)")
    if opt['wsoff']:
        A(f"s_add_u32 s16, s16, {opt['wsoff'] << 20}")
        A("s_addc_u32 s17, s17, 0")
    A(f"s_cmp_ge_u32 s{sWAVE}, 2")
    A("s_cselect_b32 s24, s8, s6")
    A("s_cselect_b32 s25, s9, s7")
    A("s_and_b32 s25, s25, 0xffff")
    A(f"s_mov_b32 s26, {W_BYTES}")
    A("s_mov_b32 s27, 0x00020000")
    A("s_mov_b32 s20, s4")
    A("s_and_b32 s21, s5, 0xffff")
    A(f"s_mov_b32 s22, {X_BYTES}")
    A("s_mov_b32 s23, 0x00020000")
    def dma_w(i): return f"buffer_load_dwordx4 v{VOW+i}, s[24:27], s{sKW} offen offset:{(i&3)*1024}{opt['pol_w']} lds"
    def dma_x(i): return f"buffer_load_dwordx4 v{VOX+i}, s[20:23], s{sKX} offen offset:{(i&3)*1024}{opt['pol_x']} lds"
    def issue_stage(st, which="wx"):
        if "w" in which:
            A(f"s_mov_b32 s{sKW}, {st*64*7168*opt['fw']}")
            for h in range(2):
                A(f"s_add_u32 m0, s{sWW}, {st*WSLOT+h*4096}")
                A("s_nop 0")
                for i in range(4*h, 4*h+4): A(dma_w(i))
        if "x" in which:
            A(f"s_mov_b32 s{sKX}, {st*128*opt['fx']}")
            for h in range(2):
                A(f"s_add_u32 m0, s{sXW}, {st*32768+h*4096}")
                A("s_nop 0")
                for i in range(4*h, 4*h+4): A(dma_x(i))
    NE = 0
    if EP and EP[1] == 0: early_pf()
    issue_stage(0)
    if EP and EP[1] == 1: NE = early_pf()
    if not opt.get('rt'): stamp(A, opt, 2)
    A(f"v_and_b32 v{T0}, 15, v{VLANE}")
    A(f"v_lshrrev_b32 v{T1}, 4, v{VLANE}")
    A(f"v_bfe_u32 v{T2}, v{VLANE}, 1, 3")
    A(f"v_xor_b32 v{T2}, v{T2}, v{T1}")
    A(f"v_lshlrev_b32 v{T2}, 4, v{T2}")
    A(f"v_lshl_add_u32 v{T2}, v{T0}, 7, v{T2}")
    A(f"v_add_u32 v{VXR}, s{sXW}, v{T2}")
    A(f"v_xor_b32 v{VXR+1}, 64, v{VXR}")
    A(f"v_bfe_u32 v{T0}, v{VLANE}, 2, 3")
    A(f"v_bfe_u32 v{T2}, v{VLANE}, 2, 2")
    A(f"v_lshl_add_u32 v{T2}, v{T1}, 3, v{T2}")
    A(f"v_lshlrev_b32 v{T2}, 8, v{T2}")
    A(f"v_and_b32 v{T3}, 3, v{VLANE}")
    A(f"v_lshl_add_u32 v{T2}, v{T3}, 3, v{T2}")
    A(f"v_add_u32 v{T2}, {WBASE}, v{T2}")
    for fb in range(7):
        A(f"v_xor_b32 v{T3}, {fb}, v{T0}")
        A(f"v_lshl_add_u32 v{VWR+fb}, v{T3}, 5, v{T2}")
    A("s_mov_b32 s12, s10")
    A("s_and_b32 s13, s11, 0xffff")
    A(f"s_mov_b32 s14, {W_BYTES}")
    A("s_mov_b32 s15, 0x00020000")
    A(f"s_lshl_b32 s{sGW}, s2, 2")
    A(f"s_add_u32 s{sGW}, s{sGW}, s{sWAVE}")
    A(f"s_lshl_b32 s57, s{sIDX}, 2")
    A(f"s_add_u32 s57, s57, s{sWAVE}")
    A("s_lshl_b32 s57, s57, 14")
    A("s_and_b32 s58, s3, 1")
    A("s_lshl_b32 s58, s58, 21")
    A("s_add_u32 s57, s57, s58")
    A(f"v_lshrrev_b32 v{T0}, 1, v{VLANE}")
    A(f"v_lshlrev_b32 v{T0}, 11, v{T0}")
    A(f"v_and_b32 v{T1}, 1, v{VLANE}")
    A(f"v_lshl_add_u32 v{T0}, v{T1}, 6, v{T0}")
    A(f"v_add_u32 v{T0}, s57, v{T0}")
    A(f"v_cmp_gt_u32 vcc, 16, v{VLANE}")
    A(f"s_lshl_b32 s57, s{sIDX}, 1")
    A("s_add_u32 s57, s57, s52")
    A(f"v_cndmask_b32 v{VPX}, v0, v{T0}, vcc")
    A("s_mul_i32 s57, s57, 7168")
    A("s_lshr_b32 s58, s3, 1")
    A("s_mul_i32 s58, s58, 1792")
    A("s_add_u32 s57, s57, s58")
    A(f"v_lshlrev_b32 v{T1}, 6, v{VLANE}")
    A(f"v_add_u32 v{T0}, s57, v{T1}")
    A(f"v_cmp_gt_u32 vcc, 28, v{VLANE}")
    A(f"s_lshl_b32 s57, s{sGW}, 9")
    A(f"s_mov_b32 s{sPF2}, 0")
    A(f"v_cndmask_b32 v{VPW}, v0, v{T0}, vcc")
    A(f"v_add_u32 v{T0}, s57, v{T1}")
    A(f"v_cmp_gt_u32 vcc, 8, v{VLANE}")
    A("s_mov_b32 s28, s16")
    A("s_and_b32 s29, s17, 0xffff")
    A(f"v_cndmask_b32 v{VP2}, v0, v{T0}, vcc")
    A(f"s_mov_b32 s30, {WS_RANGE}")
    A("s_mov_b32 s31, 0x00020000")
    A(f"s_mov_b32 s{sC0}, 0xbfb8aa3b")
    A(f"s_mov_b32 s{sC0+1}, 0xbfb8aa3b")
    A(f"s_mov_b32 s{sC1}, 1.0")
    A(f"s_mov_b32 s{sC1+1}, 1.0")
    A("s_mov_b32 s52, s62")
    A("s_and_b32 s53, s63, 0xffff")
    A("s_mov_b32 s54, 4")
    A("s_mov_b32 s55, 0x00020000")
    for i in range(4): A(f"v_accvgpr_write_b32 a{NA-4+i}, 0")
    A(f"v_lshlrev_b32 v{T1}, 2, v{VLANE}")
    A(f"v_lshlrev_b32 v{T2}, 4, v{VLANE}")
    A(f"s_lshl_b32 s{sXB}, s{sGW}, 13")
    A(f"s_add_u32 s{sXB}, s{sXB}, {XCH_OFF}")
    PFD = opt['pf_dist']
    def pf_x(so): return f"buffer_load_dword a{NA}, v{VPX}, s[20:23], {so} offen"
    def pf_w(so): return f"buffer_load_dword a{NA}, v{VPW}, s[24:27], {so} offen{opt['pol_pw']}"
    def pf_2(): return f"buffer_load_dword a{NA}, v{VP2}, s[12:15], s{sPF2} offen"
    for t in range(14):
        A(f"v_mfma_f32_32x32x16_bf16 v[{16*t}:{16*t+15}], a[{NA-4}:{NA-1}], a[{NA-4}:{NA-1}], 0")
    def acc(fb, gu, mb): return 4*((fb*2+gu)*4+mb)
    def mfmas(st):
        out = []
        for fb in range(7):
            for gu in range(2):
                for mb in range(4):
                    c = acc(fb, gu, mb); w = WSET[st]+4*(fb*2+gu); x = XSET[st]+4*mb
                    out.append(f"{MF} v[{c}:{c+3}], a[{w}:{w+3}], a[{x}:{x+3}], v[{c}:{c+3}]")
        return out
    def wreads(st, ks):
        out = []
        for fb in range(7):
            for gu in range(2):
                w = WSET[st]+4*(fb*2+gu); off = ks*8192 + gu*16384
                out.append(f"ds_read_b64_tr_b16 a[{w}:{w+1}], v{VWR+fb} offset:{off}")
                out.append(f"ds_read_b64_tr_b16 a[{w+2}:{w+3}], v{VWR+fb} offset:{off+1024}")
        return out
    def xreads(st, ks):
        return [f"ds_read_b128 a[{XSET[st]+4*mb}:{XSET[st]+4*mb+3}], v{VXR+ks} offset:{mb*2048}" for mb in range(4)]
    NPF = 3
    NV = 16 + 2*NPF
    JIT = opt['jit']
    issue_stage(1, "w" if JIT else "wx")
    if EP and EP[1] == 2: NE = early_pf()
    def code_pf(tag, lo, n):
        A("s_getpc_b64 s[6:7]")
        A.label(f"L_pc{tag}")
        A(f"s_lshl_b32 s8, s{sIDX}, 2")
        A(f"s_add_u32 s8, s8, s{sWAVE}")
        A("s_lshl_b32 s8, s8, 6")
        A(f"s_add_u32 s8, s8, {lo} - L_pc{tag}")
        A("s_add_u32 s6, s6, s8")
        A("s_addc_u32 s7, s7, 0")
        for k in range(n): A(f"s_load_dword s8, s[6:7], {8192*k}")
    if opt['cpf'] & 1: code_pf("a", "L1_loop", opt['cpf_n'])
    A(f"s_cmp_lg_u32 s{sGW}, 0")
    A("s_cbranch_scc1 L_notok")
    A("s_memrealtime s[4:5]")
    A("s_waitcnt lgkmcnt(0)")
    A("s_or_b32 s4, s4, 1")
    A(f"v_mov_b32 v{T0}, s4")
    A(f"buffer_store_dword v{T0}, v{T1}, s[52:55], 0 offen sc1")
    A.label("L_notok")
    A(f"s_mov_b32 s{sKW}, {2*64*7168*opt['fw']}")
    A(f"s_mov_b32 s{sKX}, {(128 if JIT else 256)*opt['fx']}")
    A(f"s_mov_b32 s{sIW}, {64*7168*opt['fw']}")
    A(f"s_mov_b32 s{sIX}, {128*opt['fx']}")
    A(f"s_mov_b32 s{sPX}, {PFD*128 if opt['fx'] else 0x40000000}")
    A(f"s_mov_b32 s{sPW}, {PFD*64*7168 if opt['fw'] else 0x40000000}")
    if not opt['f2']: A(f"s_mov_b32 s{sPF2}, 0x40000000")
    A(f"s_mov_b32 s{sMX}, s{sXW}")
    A(f"s_add_u32 s{sMW}, s{sWW}, {2*WSLOT}")
    A(f"s_mov_b32 s{sRS}, 0")
    A(f"s_mov_b32 s{sSL}, {WSLOT}")
    A(f"s_mov_b32 s{sCNT}, 0")
    if not opt.get('rt'): stamp(A, opt, 3)
    A(f"s_waitcnt vmcnt({(8 if JIT else 16) + NE})")
    A("s_barrier")
    stamp(A, opt, 4); stamp(A, opt, 8, True)
    for r in xreads(0, 0) + wreads(0, 0): A(r)
    rg = opt['rd_gaps']
    def q1(first):
        pre = []
        if first and JIT:
            A(f"s_add_u32 m0, s{sXW}, 32768")
            A("s_nop 0")
            for i in range(4): A(dma_x(i))
            A(f"s_add_u32 m0, s{sXW}, {32768+4096}")
        A("s_waitcnt lgkmcnt(0)")
        f = place(xreads(1, 1) + wreads(1, 1), rg)
        if first:
            dg = list(opt['q1f_dma']); nw = 8
            if JIT:
                dg = list(opt['q1j_dma'])
                f += place([dma_x(i) for i in range(4, 8)], dg[:4]); f += [(dg[3], f"s_mov_b32 s{sKX}, 256")]
                dg = dg[4:]
            f += [(dg[0]-1, f"s_mov_b32 m0, s{sMW}"), (dg[4]-1, f"s_add_u32 m0, s{sMW}, 4096")]
        else:
            dg = opt['q1_dma']; nw = 2
        f += place([dma_w(i) for i in range(8-nw, 8)], dg[0:nw])
        xg = dg[nw:nw+8]; pg = dg[nw+8:]
        f += [(xg[0]-2, "s_waitcnt lgkmcnt(8)"), (xg[0]-1, f"s_mov_b32 m0, s{sMX}"), (xg[4]-1, f"s_add_u32 m0, s{sMX}, 4096")]
        assert sum(1 for g in rg if g <= xg[0]-2) >= 12 and xg[0]-1 > dg[nw-1] and xg[4]-1 > xg[3]
        f += place([dma_x(i) for i in range(8)], xg)
        f += place([pf_w(f"s{sPW}"), pf_x(f"s{sPX}"), pf_2()], pg)
        b = max(rg)+1
        w = dg[nw-1]
        f += [(w+1, f"s_add_u32 s{sKW}, s{sKW}, s{sIW}"),
              (w+1, f"s_lshl_b32 s{sT}, s{sRS}, 15"), (w+2, f"s_add_u32 s{sMW}, s{sWW}, s{sT}"),
              (w+2, f"s_add_u32 s{sRS}, s{sRS}, 1"), (w+3, f"s_cmp_eq_u32 s{sRS}, 3"),
              (w+3, f"s_cselect_b32 s{sDR}, {(-2*WSLOT) & 0xffffffff}, s{sSL}"), (w+3, f"s_cselect_b32 s{sRS}, 0, s{sRS}")]
        assert w+3 < b
        for k in range(7):
            f.append((b+k, f"v_add_u32 v{VWR+k}, s{sDR}, v{VWR+k}"))
        f += [(b+7, f"v_xor_b32 v{VXR}, 0x8000, v{VXR}"), (b+8, f"v_xor_b32 v{VXR+1}, 0x8000, v{VXR+1}")]
        e = xg[7]+1
        f += [(e, f"s_xor_b32 s{sMX}, s{sMX}, 0x8000"), (e, f"s_add_u32 s{sKX}, s{sKX}, s{sIX}")]
        e = max(dg)+1
        assert e+1 <= 55 and b+8 <= 55
        f += [(e, f"s_add_u32 s{sPW}, s{sPW}, {64*7168}"), (e, f"s_add_u32 s{sPF2}, s{sPF2}, 524288"), (e, f"s_add_u32 s{sPX}, s{sPX}, 128"),
              (e+1, f"s_cmp_ge_u32 s{sPX}, 2048"), (e+1, f"s_cselect_b32 s{sPX}, 0x40000000, s{sPX}"),
              (55, f"s_add_u32 s{sCNT}, s{sCNT}, 1"), (55, f"s_cmp_lt_u32 s{sCNT}, 14")]
        emit_phase(A, mfmas(0), f)
    q1(True)
    A(f"s_waitcnt vmcnt({16+NPF + (NE if (EP and EP[1] == 2 and not JIT) else 0)}) lgkmcnt(0)")
    A("s_branch L1_bar")
    A.raw(".p2align 6")
    A.label("L1_loop")
    A(f"s_waitcnt vmcnt({NV}) lgkmcnt(0)")
    A.label("L1_bar")
    A("s_barrier")
    if opt.get('pp'):
        A(f"s_mov_b32 m0, s{sCNT}"); A("s_nop 3"); A(f"v_writelane_b32 v{T0}, s96, m0")
        A("s_memtime s[96:97]")
    f = place(xreads(0, 0) + wreads(0, 0), rg)
    dg = opt['q0_dma']
    f += [(dg[0]-1, f"s_mov_b32 m0, s{sMW}"), (dg[4]-1, f"s_add_u32 m0, s{sMW}, 4096")]
    f += place([dma_w(i) for i in range(6)], dg)
    emit_phase(A, mfmas(1), f)
    q1(False)
    A("s_cbranch_scc1 L1_loop")
    sKH2, sMT2, sNT2 = 4, 5, 6
    def ppstamp(k):
        if opt.get('pp'):
            A(f"v_writelane_b32 v{T0}, s96, {k}")
            A("s_memtime s[96:97]")
    def dma2(i): return f"buffer_load_dwordx4 v{VOW+i}, s[20:23], s{sWW} offen offset:{(i&3)*1024} lds"
    def dma2_group(gaps, m0base, so):
        return [(gaps[0]-1, f"s_add_u32 m0, s{sXW}, {m0base}"), (gaps[0]-1, f"s_mov_b32 s{sWW}, {so}"),
                (gaps[4]-1, f"s_add_u32 m0, s{sXW}, {m0base+4096}")] + place([dma2(i) for i in range(8)], gaps)
    VH, Z3, Z0, Z1, Z2, VPO, VPR = VOX, VOX+1, VOX+2, VOX+3, VOX+4, VOX+5, VOX+6
    REG = [98304, 131072, 0, 32768]
    sw = [f"s_and_b32 s{sKH2}, s3, 1", f"s_lshr_b32 s{sMT2}, s3, 1", f"s_lshl_b32 s{sMT2}, s{sMT2}, 2",
          f"s_and_b32 s{sNT2}, s{sIDX}, 3", f"s_add_u32 s{sMT2}, s{sMT2}, s{sNT2}", f"s_lshr_b32 s{sNT2}, s{sIDX}, 2",
          f"s_mul_i32 s7, s{sKH2}, {W_BYTES//2}", "s_add_u32 s20, s10, s7", "s_addc_u32 s21, s11, 0", "s_and_b32 s21, s21, 0xffff",
          f"s_mov_b32 s22, {W_BYTES//2}",
          f"s_lshl_b32 s7, s{sWAVE}, 16", f"s_lshl_b32 s8, s{sNT2}, 8", "s_add_u32 s7, s7, s8"]
    vw = [f"v_lshrrev_b32 v{Z0}, 4, v{VLANE}", f"v_bfe_u32 v{Z1}, v{VLANE}, 1, 3", f"v_xor_b32 v{Z1}, v{Z1}, v{Z0}",
          f"v_and_b32 v{Z2}, 1, v{VLANE}", f"v_lshlrev_b32 v{Z2}, 4, v{Z2}", f"v_lshl_add_u32 v{Z2}, v{Z0}, 11, v{Z2}",
          f"v_lshl_add_u32 v{Z2}, v{Z1}, 5, v{Z2}", f"v_add_u32 v{Z2}, s7, v{Z2}", f"v_xor_b32 v{Z0}, 128, v{Z2}"]
    vw += [f"v_add_u32 v{VOW+i}, {i*8192 - (i & 3)*1024}, v{Z0 if (i >> 1) & 1 else Z2}" for i in range(4)]
    A(f"s_waitcnt vmcnt({NV}) lgkmcnt(0)")
    A("s_barrier")
    ppstamp(14)
    f = place(xreads(0, 0) + wreads(0, 0), rg)
    f += [(i//2, x) for i, x in enumerate(sw)]
    f += [(i+1, x) for i, x in enumerate(vw)]
    f += [(7, f"s_lshl_b32 s8, s{sIDX}, 2"), (7, f"s_add_u32 s8, s8, s{sWAVE}"), (8, "s_lshr_b32 s9, s8, 5"), (8, "s_and_b32 s8, s8, 31"), (9, "s_mul_i32 s9, s9, 917504"), (9, "s_lshl_b32 s8, s8, 13"),
          (10, "s_add_u32 s8, s8, s9"), (10, "s_add_u32 s9, s8, 4096"),
          (0, f"v_lshlrev_b32 v{Z3}, 6, v{VLANE}"),
          (11, f"buffer_load_dword a{NA}, v{Z3}, s[20:23], s8 offen"), (15, f"buffer_load_dword a{NA}, v{Z3}, s[20:23], s9 offen")]
    emit_phase(A, mfmas(1), f)
    A("s_waitcnt lgkmcnt(0)")
    f = place(xreads(1, 1) + wreads(1, 1), rg)
    b = max(rg)+1
    f += [(b+k, f"v_add_u32 v{VWR+k}, {(-2*WSLOT) & 0xffffffff}, v{VWR+k}") for k in range(7)]
    f += [(b+7, f"v_xor_b32 v{VXR}, 0x8000, v{VXR}"), (b+8, f"v_xor_b32 v{VXR+1}, 0x8000, v{VXR+1}")]
    emit_phase(A, mfmas(0), f)
    A(f"s_waitcnt vmcnt({NPF+2}) lgkmcnt(0)")
    A("s_barrier")
    ppstamp(15)
    f = place(xreads(0, 0) + wreads(0, 0), rg)
    f += [(13, f"s_lshl_b32 s8, s{sMT2}, 2"), (14, f"s_add_u32 s8, s8, s{sKH2}"), (15, "s_lshl_b32 s8, s8, 7"), (16, f"s_add_u32 s8, s8, {HFLAG_OFF}"),
          (13, f"v_and_b32 v{VPO}, 60, v{T1}"), (14, f"v_bfe_u32 v{Z0}, v{VLANE}, 4, 1"), (15, f"v_lshl_add_u32 v{VPO}, v{Z0}, 8, v{VPO}"),
          (17, f"v_add_u32 v{VPO}, s8, v{VPO}")]
    if opt['fwarm']: f += [(20, f"buffer_load_dword v{VPR}, v{VPO}, s[28:31], 0 offen sc1")]
    f += [(0, f"s_lshl_b32 s7, s{sBLK}, 1"), (1, f"s_mul_i32 s7, s7, {H_MB_STRIDE}"), (4, f"s_mul_i32 s8, s{sNT}, 7168"),
          (5, "s_add_u32 s7, s7, s8"), (8, f"v_add_u32 v{VH}, s7, v{T2}")]
    f += [(9, f"s_mov_b32 s42, s{sXB}"), (12, "s_add_u32 s43, s42, 4096")]
    f += [(54, f"buffer_load_dword v{VTOK}, v{T1}, s[52:55], 0 offen sc1")]
    emit_phase(A, mfmas(1), f)
    A.label("L1_done")
    stamp(A, opt, 5); stamp(A, opt, 9, True)
    A("s_waitcnt lgkmcnt(0)")
    def epi(fb, p):
        o = []
        g = acc(fb, 0, 2*p); u = acc(fb, 1, 2*p)
        for i in range(4): o.append(f"v_pk_mul_f32 v[{u+2*i}:{u+2*i+1}], v[{g+2*i}:{g+2*i+1}], v[{u+2*i}:{u+2*i+1}]")
        for i in range(4): o.append(f"v_pk_mul_f32 v[{g+2*i}:{g+2*i+1}], v[{g+2*i}:{g+2*i+1}], s[{sC0}:{sC0+1}]")
        for i in range(8): o.append(f"v_exp_f32 v{g+i}, v{g+i}")
        for i in range(4): o.append(f"v_pk_add_f32 v[{g+2*i}:{g+2*i+1}], v[{g+2*i}:{g+2*i+1}], s[{sC1}:{sC1+1}]")
        for i in range(8): o.append(f"v_rcp_f32 v{g+i}, v{g+i}")
        for i in range(4): o.append(f"v_pk_mul_f32 v[{u+2*i}:{u+2*i+1}], v[{g+2*i}:{g+2*i+1}], v[{u+2*i}:{u+2*i+1}]")
        for i in range(4): o.append(f"v_cvt_pk_bf16_f32 v{g+i}, v{u+2*i}, v{u+2*i+1}")
        o.append(f"s_mov_b32 s{sT}, {p*H_MB_STRIDE + (fb//4)*4096}")
        o.append("s_nop 0")
        o.append(f"v_permlane16_swap_b32 v{g}, v{g+2}")
        o.append(f"v_permlane16_swap_b32 v{g+1}, v{g+3}")
        o.append(f"buffer_store_dwordx4 v[{g}:{g+3}], v{VH}, s[28:31], s{sT} offen offset:{(fb%4)*1024} sc1")
        return o
    m0s, m1s = mfmas(0), mfmas(1)
    order = [('A', 0)]
    for k in range(6): order += [('A', k+1), ('B', k)]
    order += [('B', 6)]
    ml = []; done = {}
    f = [(i, r) for i, r in enumerate(xreads(1, 1) + wreads(1, 1))]
    for kind, fb in order:
        if kind == 'B':
            issued = min(32, len(ml)); need = 8 + 4*fb
            f.append((len(ml)-1, f"s_waitcnt lgkmcnt({min(15, issued-need)})"))
        ml += (m0s if kind == 'A' else m1s)[8*fb:8*fb+8]
        if kind == 'B': done[fb] = len(ml)
    stream = [(fb, ins) for fb in range(7) for p in range(2) for ins in epi(fb, p)]
    pos = 0
    if opt['epi_plain']:
        nfb = opt['epi_plain']
        pre = []
        for fb in range(nfb):
            for p in range(2):
                g = acc(fb, 0, 2*p); u = acc(fb, 1, 2*p)
                pre += [(fb, f"v_mul_f32 v{u+i}, v{g+i}, v{u+i}") for i in range(8)]
                pre += [(fb, f"v_mul_f32 v{g+i}, s{sC0}, v{g+i}") for i in range(8)]
        rest = [(7, ins) for fb in range(7) for p in range(2) for ins in (epi(fb, p)[8:] if fb < nfb else epi(fb, p))]
        stream = pre + rest; done[7] = 10**6
    for gap in range(done[0]+2, len(ml)):
        for _ in range(opt['epi_n']):
            if done[stream[pos][0]] + 2 <= gap:
                f.append((gap, stream[pos][1])); pos += 1
    emit_phase(A, ml, f)
    if opt['cpf'] & 2:
        A("s_getpc_b64 s[10:11]")
        A.label("L_pcb")
        A(f"s_lshl_b32 s8, s{sIDX}, 2")
        A(f"s_add_u32 s8, s8, s{sWAVE}")
        A("s_lshl_b32 s8, s8, 6")
        A("s_add_u32 s8, s8, L_hgo - L_pcb")
        A("s_add_u32 s10, s10, s8")
        A("s_addc_u32 s11, s11, 0")
        for k in range(2): A(f"s_load_dword s63, s[10:11], {8192*k}")
    assert stream[pos][0] <= 4 or stream[pos][0] == 7
    for fb, ins in stream[pos:]: A(ins)
    poll = f"buffer_load_dword v{VPR}, v{VPO}, s[28:31], 0 offen sc1"
    A(poll)
    stamp(A, opt, 6)
    R = 8
    ACC = 0; WS = [64, 96]; VWD = 128; VRD = 132
    VHL, VO, VX, VF = 148, 149, 150, 151
    U0, U1, U2, U3 = 152, 153, 154, 155
    VSO = 157
    sRDY, sNP = 46, 47
    sKW2, sKH, sM, sTOK, sMB = 33, 34, 35, 36, 37
    def slot_addr(k): return REG[k >> 1] + (k & 1)*16384
    A(f"s_lshl_b32 s7, s{sWAVE}, 15")
    for i in range(4): A(f"v_subrev_u32 v{VWD+i}, s7, v{VOW+i}")
    A(f"v_and_b32 v{U0}, 15, v{VLANE}")
    A(f"v_bfe_u32 v{U1}, v{VLANE}, 4, 1")
    A(f"v_lshl_add_u32 v{U0}, v{U1}, 5, v{U0}")
    A(f"v_lshlrev_b32 v{U0}, 4, v{U0}")
    A(f"v_lshrrev_b32 v{U1}, 5, v{VLANE}")
    A(f"v_lshl_add_u32 v{VHL}, v{U1}, 10, v{U0}")
    A(f"s_lshl_b32 s{sM}, s{sWAVE}, 12")
    A(f"s_lshl_b32 s{sMB}, s{sMT2}, 2")
    A(f"s_add_u32 s{sMB}, s{sMB}, s{sWAVE}")
    A(f"s_mul_i32 s7, s{sMB}, {H_MB_STRIDE}")
    A(f"s_mul_i32 s8, s{sKH2}, {H_MB_STRIDE//2}")
    A("s_add_u32 s7, s7, s8")
    A("s_add_u32 s24, s16, s7")
    A("s_addc_u32 s25, s17, 0")
    A("s_and_b32 s25, s25, 0xffff")
    A(f"s_mov_b32 s26, {H_MB_STRIDE//2}")
    A("s_mov_b32 s27, 0x00020000")
    A(f"v_lshrrev_b32 v{U1}, 4, v{VLANE}")
    A(f"v_bfe_u32 v{U0}, v{VLANE}, 2, 3")
    A(f"s_lshl_b32 s7, s{sKH2}, 2")
    A("s_xor_b32 s7, s7, 4")
    A(f"v_xor_b32 v{U0}, s7, v{U0}")
    A(f"v_bfe_u32 v{U2}, v{VLANE}, 2, 2")
    A(f"v_lshl_add_u32 v{U2}, v{U1}, 3, v{U2}")
    A(f"v_lshlrev_b32 v{U2}, 8, v{U2}")
    A(f"v_and_b32 v{U3}, 3, v{VLANE}")
    A(f"v_lshl_add_u32 v{U2}, v{U3}, 3, v{U2}")
    for nb in range(8):
        A(f"v_xor_b32 v{U3}, {nb}, v{U0}")
        A(f"v_lshl_add_u32 v{VRD+nb}, v{U3}, 5, v{U2}")
        A(f"v_add_u32 v{VRD+8+nb}, 98304, v{VRD+nb}")
    def hreg(slot, ks, mb): return slot*16 + ks*8 + mb*4
    A(f"s_lshr_b32 s7, s{sNT}, 4")
    A(f"s_lshl_b32 s8, s{sBLK}, 1")
    A("s_add_u32 s7, s7, s8")
    A("s_lshl_b32 s7, s7, 7")
    A(f"s_and_b32 s8, s{sNT}, 15")
    A("s_lshl_b32 s8, s8, 2")
    A("s_add_u32 s7, s7, s8")
    A(f"s_add_u32 s7, s7, {HFLAG_OFF}")
    A(f"v_mov_b32 v{VSO}, s7")
    A(f"v_mov_b32 v{U1}, {WBASE+224}")
    A(f"s_mov_b32 s{sCNT}, 0")
    if opt.get('pp'): A("s_mov_b32 s98, 16")
    A("s_mov_b32 s9, 0x40000")
    A("s_waitcnt vmcnt(1)")
    stamp(A, opt, 7)
    A.label("L_tok")
    A(f"v_readfirstlane_b32 s{sTOK}, v{VTOK}")
    A("s_nop 0")
    A(f"s_cmp_lg_u32 s{sTOK}, 0")
    A("s_cbranch_scc1 L_tok_ok")
    A("s_sleep 2")
    A(f"buffer_load_dword v{VTOK}, v{T1}, s[52:55], 0 offen sc1")
    A("s_waitcnt vmcnt(0)")
    A("s_sub_u32 s9, s9, 1")
    A("s_cbranch_scc0 L_tok")
    A.label("L_tok_ok")
    A("s_mov_b32 s9, 0x40000")
    A(f"v_mov_b32 v{VF}, s{sTOK}")
    A("s_mov_b64 exec, 1")
    A(f"buffer_store_dword v{VF}, v{VSO}, s[28:31], 0 offen sc1")
    A("s_mov_b64 exec, -1")
    def ready_mask():
        A(f"v_cmp_eq_u32 vcc, s{sTOK}, v{VPR}")
        A("s_nop 4")
        A("s_lshr_b32 s7, vcc_lo, 16")
        A(f"s_and_b32 s{sRDY}, s7, vcc_lo")
    A(f"s_cmp_lg_u32 s{sWAVE}, 0")
    A("s_cbranch_scc1 L_dec_bar")
    A("s_waitcnt vmcnt(1)")
    A.label("L_dec")
    ready_mask()
    A(f"s_lshr_b32 s7, s{sRDY}, 1")
    A(f"s_and_b32 s7, s7, s{sRDY}")
    A("s_lshr_b32 s8, s7, 2")
    A("s_and_b32 s7, s7, s8")
    A("s_and_b32 s7, s7, 0x1111")
    A("s_cbranch_scc1 L_dec_ok")
    A("s_sleep 1")
    A(poll)
    A("s_waitcnt vmcnt(0)")
    A("s_sub_u32 s9, s9, 1")
    A("s_cbranch_scc0 L_dec")
    A.label("L_dec_ok")
    A("s_lshl_b32 s8, s7, 4")
    A("s_lshr_b32 s9, s7, 12")
    A("s_or_b32 s8, s8, s9")
    A("s_andn2_b32 s7, s7, s8")
    A("s_ff1_i32_b32 s8, s7")
    A("s_max_i32 s8, s8, 0")
    A("s_lshl_b32 s8, s8, 16")
    A(f"s_or_b32 s8, s8, s{sRDY}")
    A(f"v_mov_b32 v{U0}, s8")
    A(f"ds_write_b32 v{U1}, v{U0}")
    A("s_waitcnt lgkmcnt(0)")
    A.label("L_dec_bar")
    A("s_barrier")
    A(f"ds_read_b32 v{U0}, v{U1}")
    def rd(st, slot, ks):
        out = []
        sa = slot_addr(slot)
        for nb in range(8):
            w = WS[st]+4*nb
            base = VRD + nb + (8 if sa >= 98304 else 0)
            off = (sa - 98304 if sa >= 98304 else sa) + ks*8192
            out.append(f"ds_read_b64_tr_b16 v[{w}:{w+1}], v{base} offset:{off}")
            out.append(f"ds_read_b64_tr_b16 v[{w+2}:{w+3}], v{base} offset:{off+1024}")
        return out
    A("s_waitcnt lgkmcnt(0)")
    A(f"v_readfirstlane_b32 s7, v{U0}")
    A("s_mov_b32 s9, 0x40000")
    A.label("L_hgo")
    A(f"s_and_b32 s{sRDY}, s7, 0xffff")
    A("s_lshr_b32 s8, s7, 16")
    A(f"s_mul_i32 s{sKH}, s8, 7168")
    A(f"s_mul_i32 s{sKW2}, s8, 229376")
    A(f"s_add_u32 s{sNP}, s8, 4")
    A(f"s_and_b32 s{sNP}, s{sNP}, 15")
    stamp(A, opt, 10)
    if opt.get('rt'): stamp(A, opt, 2, True)
    def dma(i): return f"buffer_load_dwordx4 v{VWD+i}, s[20:23], s{sKW2} offen offset:{i*1024} lds"
    def hload(slot, ks, mb):
        a = hreg(slot, ks, mb)
        return f"buffer_load_dwordx4 a[{a}:{a+3}], v{VHL}, s[24:27], s{sKH} offen offset:{ks*2048+mb*256} sc1"
    HP = opt['h_pre']
    WD = opt['w_pre']
    assert HP == 4 and WD in (4, 5, 6)
    advh = [f"s_add_u32 s{sKH}, s{sKH}, 4096", f"s_cmp_eq_u32 s{sKH}, {28*4096}", f"s_cselect_b32 s{sKH}, 0, s{sKH}"]
    advw = [f"s_add_u32 s{sKW2}, s{sKW2}, 131072", f"s_cmp_eq_u32 s{sKW2}, {28*131072}", f"s_cselect_b32 s{sKW2}, 0, s{sKW2}"]
    seq = []
    def allowed(tag):
        if tag not in seq: return 63
        return len(seq) - 1 - max(i for i, t in enumerate(seq) if t == tag)
    def pre(st):
        A(f"s_add_u32 m0, s{sM}, {slot_addr(st)}")
        A("s_nop 0")
        for i in range(4): A(dma(i))
        for x in advw: A(x)
        for ks in range(2):
            for mb in range(2): A(hload(st, ks, mb))
        for x in advh: A(x)
        seq.extend([('w', st)]*4 + [('h', st, 0)]*2 + [('h', st, 1)]*2)
    pre(0); pre(1)
    A(f"s_waitcnt vmcnt({allowed(('w', 0))})")
    A("s_barrier")
    for r in rd(0, 0, 0): A(r)
    pre(2); pre(3)
    def mf(st, slot, ks, zero=False):
        out = []
        for nb in range(8):
            for mb in range(2):
                c = ACC+4*(nb*2+mb); w = WS[st]+4*nb; h = hreg(slot, ks, mb)
                out.append(f"{MF} v[{c}:{c+3}], v[{w}:{w+3}], a[{h}:{h+3}], " + ("0" if zero else f"v[{c}:{c+3}]"))
        return out
    def wplan(p):
        if p == 0: return ([], list(range(4, WD+1)))
        return ([p+WD] if p+WD < 28 else [], [])
    top = {}; mid = {}
    NP = 28 - opt['xl']
    for p in range(NP):
        top[p] = min(allowed(('w', p)), allowed(('h', p-1, 1)), 63)
        for w in wplan(p)[0]: seq += [('w', w)]*4
        mid[p] = min(allowed(('h', p, 0)), 63)
        seq += [('h', p+HP, 0)]*2 + [('h', p+HP, 1)]*2
        for w in wplan(p)[1]: seq += [('w', w)]*4
    LG = opt['lg2']
    stubs = []
    def wgroup(w, gaps):
        return [(gaps[0]-1, f"s_add_u32 m0, s{sM}, {slot_addr(w % R)}")] + [(g, dma(i)) for i, g in enumerate(gaps)] + [(gaps[3], x) for x in advw]
    def period(ps, last):
        u = ps[0] % R
        pm = (u-1) % R; hs = (u+HP) % R
        if ps[0] > 0:
            A(f"s_waitcnt vmcnt({min(top[p] for p in ps)})")
            A("s_barrier")
        if opt.get('pp'):
            A("s_mov_b32 m0, s98"); A("s_nop 3"); A(f"v_writelane_b32 v{T0}, s96, m0")
            A("s_memtime s[96:97]")
            A("s_add_u32 s98, s98, 1")
        f = [(i, r) for i, r in enumerate(rd(0, u, 0))]
        f += [(2*nb-1, f"s_waitcnt lgkmcnt({LG})") for nb in range(8)]
        for w in wplan(ps[0])[0]: f += wgroup(w, opt['g2_dma'])
        if ps[0] in (3, 9):
            f += [(12, f"s_lshl_b32 s8, 15, s{sNP}"), (12, f"s_andn2_b32 s7, s8, s{sRDY}"), (12, f"s_cbranch_scc1 L2_w{ps[0]}"), (12, f"L2_b{ps[0]}:"),
                  (13, f"s_add_u32 s{sNP}, s{sNP}, 4"), (13, f"s_and_b32 s{sNP}, s{sNP}, 15")]
            stubs.append(ps[0])
        if ps[0] > 0: emit_phase(A, mf(1, pm, 1), f)
        f = [(i, r) for i, r in enumerate(rd(1, u, 1))]
        f += [(-1, f"s_waitcnt vmcnt({min(mid[p] for p in ps)}) lgkmcnt({LG})")]
        f += [(2*nb-1, f"s_waitcnt lgkmcnt({LG})") for nb in range(1, 8)]
        hg = opt['g2_h'] if ps[0] else [0, 1, 2, 3]
        f += [(g, hload(hs, i >> 1, i & 1)) for i, g in enumerate(hg)]
        f += [(14, x) for x in advh]
        for k, w in enumerate(wplan(ps[0])[1]): f += wgroup(w, [[5, 6, 7, 8], [10, 11, 12, 12], [14, 14, 15, 15]][k])
        if last:
            f += [(15, f"s_add_u32 s{sCNT}, s{sCNT}, 1"), (15, f"s_cmp_lt_u32 s{sCNT}, 2")]
        emit_phase(A, mf(0, u, 0, ps[0] == 0), f)
    for p in range(4): period([p], False)
    A.raw(".p2align 6")
    A.label("L2_loop")
    for p in range(4, 12): period([p, p+8], p == 11)
    A("s_cbranch_scc1 L2_loop")
    for p in range(20, NP): period([p], False)
    A.label("L2_done")
    def mft(st, items):
        out = []
        for j, (stg, ks, nb) in enumerate(items):
            for mb in range(2):
                c = ACC+4*(nb*2+mb); w = WS[st]+4*j; h = hreg(stg % R, ks, mb)
                out.append(f"{MF} v[{c}:{c+3}], v[{w}:{w+3}], a[{h}:{h+3}], v[{c}:{c+3}]")
        return out
    def rdt(st, items):
        out = []
        for j, (stg, ks, nb) in enumerate(items):
            r = rd(st, stg % R, ks)[2*nb:2*nb+2]
            w = WS[st]+4*j; wo = WS[st]+4*nb
            out.append(r[0].replace(f"v[{wo}:{wo+1}]", f"v[{w}:{w+1}]"))
            out.append(r[1].replace(f"v[{wo+2}:{wo+3}]", f"v[{w+2}:{w+3}]"))
        return out
    ph = [[(NP-1, 1, nb) for nb in range(8)]]
    for half in range(2):
        for stg in range(NP, 28): ph.append([(stg, ks, 4*half+nb) for ks in range(2) for nb in range(4)])
    XL = opt['xl']
    RCV, SUM, CV, keep = 160, 192, 96, 32
    def ld(i): return f"buffer_load_dwordx4 v[{RCV+4*i}:{RCV+4*i+3}], v{VX}, s[28:31], s{44 if i < 4 else 45} offen offset:{(i&3)*1024} sc1"
    hnext = NP - 1 + HP + 1
    wcov = NP - 1
    wnext = NP + WD
    for t, items in enumerate(ph):
        st = (t+1) & 1
        nxt = ph[t+1] if t+1 < len(ph) else None
        need = [allowed(('h', stg, ks)) for stg, ks, nb in items]
        bar = nxt is not None and nxt[0][0] > wcov
        if bar:
            wcov = nxt[0][0]
            while wcov < 27 and ('w', wcov+1) in seq and allowed(('w', wcov+1)) >= opt['wage']: wcov += 1
            assert ('w', wcov) in seq
            need.append(allowed(('w', wcov)))
        f = []
        if min(need) < 63 and t <= XL: A(f"s_waitcnt vmcnt({min(need)})")
        if bar: A("s_barrier")
        if nxt:
            f += [(i, r) for i, r in enumerate(rdt(st ^ 1, nxt))]
            f += [(2*j-1, f"s_waitcnt lgkmcnt({LG})") for j in range(8)]
        else:
            f += [(2*j-1, f"s_waitcnt lgkmcnt({14-2*j})") for j in range(8)]
        if hnext < 28:
            f += [(g, hload(hnext % R, i >> 1, i & 1)) for i, g in enumerate(opt['g2_h'])]
            f += [(14, x) for x in advh]
            hs_ = [('h', hnext, 0)]*2 + [('h', hnext, 1)]*2
            hnext += 1
        else: hs_ = []
        if wnext < 28:
            assert (wnext - R) <= NP - 2 + (1 if t >= 2 else 0) - (0 if t else 0)
            f += wgroup(wnext, [1, 4, 8, 12])
            assert hs_ and opt['g2_h'] == [2, 6, 10, 14]
            for k in range(4): seq += [('w', wnext), hs_[k]]
            wnext += 1
        else: seq += hs_
        if t == XL-1:
            f += [(3, "s_xor_b32 s44, s42, 32768"), (4, "s_add_u32 s45, s44, 4096"),
                 (0, f"v_lshlrev_b32 v{VX}, 4, v{VLANE}"),
                 (10, f"v_and_b32 v{U2}, 15, v{VLANE}"), (10, f"v_lshlrev_b32 v{U2}, 11, v{U2}"),
                 (11, f"v_bfe_u32 v{U3}, v{VLANE}, 4, 1"), (11, f"v_lshl_add_u32 v{U2}, v{U3}, 5, v{U2}"),
                 (12, f"v_lshrrev_b32 v{U3}, 5, v{VLANE}"), (12, f"v_lshl_add_u32 v{U2}, v{U3}, 4, v{U2}"),
                 (1, f"s_lshl_b32 s7, s{sMB}, 16"), (1, f"s_lshl_b32 s8, s{sNT2}, 8"), (2, "s_add_u32 s7, s7, s8"),
                 (2, f"s_lshl_b32 s8, s{sKH2}, 7"), (3, "s_add_u32 s7, s7, s8"),
                 (13, f"v_add_u32 v{VO}, s7, v{U2}"),
                 (5, "s_mov_b32 s12, s60"), (5, "s_and_b32 s13, s61, 0xffff"), (6, f"s_mov_b32 s14, {OUT_BYTES}"), (6, "s_mov_b32 s15, 0x00020000"),
                 (7, f"s_mov_b32 s{sT}, 32768")]
        if t == XL:
            f += [(2*i, f"s_lshr_b32 s{46+i}, s{sTOK}, {8*i}") for i in range(4)]
            f += [(2*i+8, f"s_mov_b32 s{50+i}, {0x07060500 | i}") for i in range(4)]
            f += [(15, "s_mov_b32 s54, 0xffffff00")]
        if t == XL+1:
            stamp(A, opt, 11)
            if opt.get('rt'): stamp(A, opt, 3, True)
            for i in range(8):
                g = 2*i if i < 6 else 12 + (i-6)
                g = i + 3
                f += [(g, f"v_perm_b32 v{4*i+k}, v{4*i+k}, v{VF}, s{50+k}") for k in range(4)]
                f += [(g+1, f"buffer_store_dwordx4 v[{4*i}:{4*i+3}], v{VX}, s[28:31], s{42 if i < 4 else 43} offen offset:{(i&3)*1024} sc1")]
        if t == opt['xld']:
            f += [(2*i, ld(i)) for i in range(8)]
        emit_phase(A, mft(st, items), f)
    if opt['xld'] >= len(ph):
        for i in range(8): A(ld(i))
    for g in range(4):
        r = RCV + 8*g
        A(f"s_waitcnt vmcnt({6-2*g})")
        A.label(f"L2_c{g}")
        A(f"v_xor_b32 v{U0}, s46, v{r}")
        A(f"v_xor_b32 v{U1}, s46, v{r+4}")
        for k in range(1, 4):
            A(f"v_bitop3_b32 v{U0}, v{r+k}, s{46+k}, v{U0} bitop3:0xbe")
            A(f"v_bitop3_b32 v{U1}, v{r+4+k}, s{46+k}, v{U1} bitop3:0xbe")
        A(f"v_or_b32 v{U0}, v{U0}, v{U1}")
        A(f"v_and_b32 v{U0}, 0xff, v{U0}")
        A(f"v_cmp_ne_u32 vcc, 0, v{U0}")
        for k in range(8): A(f"v_and_b32 v{r+k}, s54, v{r+k}")
        A(f"s_cbranch_vccnz L2_r{g}")
        A.label(f"L2_o{g}")
        for i in range(4):
            A(f"v_pk_add_f32 v[{SUM+8*g+2*i}:{SUM+8*g+2*i+1}], v[{keep+8*g+2*i}:{keep+8*g+2*i+1}], v[{r+2*i}:{r+2*i+1}]")
        for mb in range(2):
            t = SUM + 8*g + 4*mb; d = CV + 4*((g >> 1)*2+mb) + 2*(g & 1)
            A(f"v_cvt_pk_bf16_f32 v{d}, v{t}, v{t+1}")
            A(f"v_cvt_pk_bf16_f32 v{d+1}, v{t+2}, v{t+3}")
        if g == 2:
            for mb in range(2):
                d = CV + 4*mb
                A(f"v_permlane16_swap_b32 v{d}, v{d+2}")
                A(f"v_permlane16_swap_b32 v{d+1}, v{d+3}")
    stamp(A, opt, 12)
    if opt.get('rt'): stamp(A, opt, 13, True)
    osc = opt['out_pol']
    for mb in range(2):
        d = CV + 4*mb
        A(f"buffer_store_dwordx4 v[{d}:{d+3}], v{VO}, s[12:15], {('s%d' % sT) if mb else 0} offen{osc}")
    for mb in range(2):
        d = CV + 8 + 4*mb
        A(f"v_permlane16_swap_b32 v{d}, v{d+2}")
        A(f"v_permlane16_swap_b32 v{d+1}, v{d+3}")
        A(f"buffer_store_dwordx4 v[{d}:{d+3}], v{VO}, s[12:15], {('s%d' % sT) if mb else 0} offen offset:64{osc}")
    A("s_branch L2_fin")
    for p in stubs:
        A.label(f"L2_w{p}")
        A(poll)
        A("s_waitcnt vmcnt(0)")
        ready_mask()
        A(f"s_andn2_b32 s7, s8, s{sRDY}")
        A(f"s_cbranch_scc0 L2_b{p}")
        A("s_cmp_eq_u32 s9, 0")
        A(f"s_cbranch_scc1 L2_b{p}")
        A("s_sub_u32 s9, s9, 1")
        A("s_sleep 2")
        A(f"s_branch L2_w{p}")
    TP = 224
    for g in range(4):
        A.label(f"L2_r{g}")
        A("s_mov_b32 exec_lo, 0")
        A("s_brev_b32 exec_hi, 1")
        A.label(f"L2_p{g}")
        A("s_cmp_eq_u32 s9, 0")
        A(f"s_cbranch_scc1 L2_q{g}")
        A("s_sub_u32 s9, s9, 1")
        A(f"s_sleep {opt['xsleep']}")
        A(f"buffer_load_dwordx4 v[{TP}:{TP+3}], v{VX}, s[28:31], s45 offen offset:3072 sc1")
        A("s_waitcnt vmcnt(0)")
        A(f"v_xor_b32 v{U0}, s46, v{TP}")
        for k in range(1, 4): A(f"v_bitop3_b32 v{U0}, v{TP+k}, s{46+k}, v{U0} bitop3:0xbe")
        A(f"v_and_b32 v{U0}, 0xff, v{U0}")
        A(f"v_cmp_ne_u32 vcc, 0, v{U0}")
        A("s_nop 4")
        A(f"s_cbranch_vccnz L2_p{g}")
        A("s_mov_b64 exec, -1")
        for i in range(2*g, 8): A(ld(i))
        A(f"s_waitcnt vmcnt({6-2*g})")
        A(f"s_branch L2_c{g}")
        A.label(f"L2_q{g}")
        A("s_mov_b64 exec, -1")
        A(f"s_branch L2_o{g}")
    A.label("L2_fin")
    if not opt.get('rt'): stamp(A, opt, 13)
    if opt.get('pp'):
        A("s_mov_b32 m0, s98"); A("s_nop 3"); A(f"v_writelane_b32 v{T0}, s96, m0")
        A("s_add_u32 s60, s16, 0x8200000")
        A("s_addc_u32 s61, s17, 0")
        A("s_and_b32 s61, s61, 0xffff")
        A("s_mov_b32 s62, 0x1000000")
        A("s_mov_b32 s63, 0x00020000")
        A(f"s_lshl_b32 s58, s{sGW}, 8")
        A(f"buffer_store_dword v{T0}, v{T1}, s[60:63], s58 offen")
    if opt.get('hdbg'):
        A("s_load_dwordx2 s[52:53], s[0:1], 40")
        A("s_waitcnt vmcnt(0) lgkmcnt(0)")
        stamp(A, opt, 15, True)
        A("s_waitcnt lgkmcnt(0)")
        A("s_and_b32 s53, s53, 0xffff")
        A("s_mov_b32 s54, 64")
        A("s_mov_b32 s55, 0x00020000")
        A(f"v_mov_b32 v{U0}, 0")
        for k, sl in enumerate([1, 8, 9, 2, 3, 13, 15]):
            A(f"s_sub_u32 s58, s{64+2*sl}, s{sTOK}")
            A("s_add_u32 s58, s58, 1000")
            A(f"v_writelane_b32 v{U0}, s58, {k+1}")
            A("s_sub_u32 s58, 100000, s58")
            A(f"v_writelane_b32 v{U0}, s58, {k+9}")
        A("s_mov_b64 exec, 0xfefe")
        A(f"buffer_atomic_umax v{U0}, v{T1}, s[52:55], 0 offen sc1")
    else:
        stamp_dump(A, opt, 0, sWAVE, U0)
    A.label("L_end")
    A("s_endpgm")
    if opt['cpf']:
        A.raw(f".org {name} + {opt['org']}, 0")
    return name, 256+NA+12, 256, LDS1

HEADER = """; Kernarg layout for this problem (56 bytes, ptrs only, base s[0:1]):
"""

def main():
    opt = dict(rd_gaps=[g for g in range(0, 44) if g % 4 != 3][:32],
               q0_dma=[3, 11, 19, 27, 35, 43],
               q1_dma=[3, 7, 19, 23, 27, 31, 35, 39, 43, 46, 49, 51, 53],
               q1f_dma=[1, 3, 5, 7, 10, 13, 16, 19, 23, 27, 31, 35, 39, 43, 45, 47, 49, 51, 53],
               q1j_dma=[0, 2, 4, 6, 9, 11, 13, 15, 18, 20, 22, 24, 28, 30, 32, 34, 37, 40, 43, 46, 49, 51, 53],
               pf_dist=5, jit=0, h_pre=4, fw=1, fx=1, f2=1, ep=None, pol_w='', pol_x='', pol_pw='', epi_n=2, epi_plain=5, sentg=[19, 23, 27, 31, 35, 39, 43, 47], w2a=[19, 23, 27, 31, 35, 39, 43, 47], w2b=[3, 7, 11, 15, 19, 23, 27, 31], xl=6, xld=12, xpf=None, wsoff=0, cpf=0, cpf_n=2, org=36864, w_pre=5, wage=8, fwarm=1, xdelay=0, xsleep=1, out_pol='', lg2=14, g2_dma=[2, 6, 10, 14], g2_h=[2, 6, 10, 14])
    for a in sys.argv[2:]:
        k, v = a.split("=", 1)
        opt[k] = eval(v)
    A = Asm()
    name, nv, ao, lds = kernel(A, opt)
    out = HEADER
    out += f"; @launch grid=(256,1,1) block=(256,1,1) lds={lds}\n"
    out += '.amdgcn_target "amdgcn-amd-amdhsa--gfx950"\n'
    out += A.text()
    out += '.section .rodata,"a"\n'
    out += f""".p2align 6
.amdhsa_kernel {name}
  .amdhsa_next_free_vgpr {nv}
  .amdhsa_next_free_sgpr {100 if opt.get('stamps') else 64}
  .amdhsa_accum_offset {ao}
  .amdhsa_group_segment_fixed_size 0
  .amdhsa_kernarg_size 56
  .amdhsa_user_sgpr_count 2
  .amdhsa_user_sgpr_kernarg_segment_ptr 1
  .amdhsa_system_sgpr_workgroup_id_x 1
.end_amdhsa_kernel
"""
    open(sys.argv[1], "w").write(out)

main()
```

```python
import sys

class Asm:
    def __init__(self):
        self.lines = []
    def __call__(self, s):
        self.lines.append("    " + s)
    def label(self, s):
        self.lines.append(s + ":")
    def raw(self, s):
        self.lines.append(s)
    def text(self):
        return "\n".join(self.lines) + "\n"

DROP = set()
def emit_phase(A, mfmas, fillers):
    if 'rdw' in DROP: fillers = [(g, i) for g, i in fillers if not i.startswith("ds_read_b64_tr")]
    if 'rdx' in DROP: fillers = [(g, i) for g, i in fillers if not i.startswith("ds_read_b128")]
    if 'dma' in DROP: fillers = [(g, i) for g, i in fillers if not i.startswith("buffer_load")]
    g = {}
    for gap, ins in fillers:
        g.setdefault(gap, []).append(ins)
    if mfmas is None:
        for k in sorted(g):
            for ins in g[k]: A(ins)
        return
    for ins in g.get(-1, []): A(ins)
    for i, m in enumerate(mfmas):
        A(m)
        for ins in g.get(i, []): A(ins)
    assert max(g) < len(mfmas)

def place(items, gaps):
    assert len(items) <= len(gaps), (len(items), len(gaps))
    return list(zip(gaps, items))

def stamp(A, opt, i, real=False):
    if opt.get('stamps'):
        A(f"s_mem{'real' if real else ''}time s[{64+2*i}:{65+2*i}]")

def stamp_dump(A, opt, kidx, sWAVE, vt):
    if not opt.get('stamps'): return
    A("s_waitcnt vmcnt(0) lgkmcnt(0)")
    stamp(A, opt, 14)
    stamp(A, opt, 15, True)
    A("s_waitcnt lgkmcnt(0)")
    A("s_add_u32 s60, s16, 0x8000000")
    A("s_addc_u32 s61, s17, 0")
    A("s_and_b32 s61, s61, 0xffff")
    A("s_mov_b32 s62, 0x1000000")
    A("s_mov_b32 s63, 0x00020000")
    A("s_lshl_b32 s58, s2, 2")
    A(f"s_add_u32 s58, s58, s{sWAVE}")
    A(f"s_add_u32 s58, s58, {kidx*1024}")
    A("s_lshl_b32 s58, s58, 7")
    A("s_mov_b64 exec, 1")
    A(f"v_mov_b32 v{vt+1}, 0")
    for i in range(32):
        A(f"v_mov_b32 v{vt}, s{64+i}")
        A(f"buffer_store_dword v{vt}, v{vt+1}, s[60:63], s58 offen offset:{4*i}")
        A("s_nop 1")

X_BYTES = 2048*1024*2
W_BYTES = 1024*3584*2
OUT_BYTES = 2048*1024*2
H_MB_STRIDE = 224*1024
H_BYTES = 64*H_MB_STRIDE
FLAG_OFF = 32 << 20
XCH_OFF = 48 << 20
WBASE = 65536
WSLOT = 32768
LDS1 = 163840
MF = "v_mfma_f32_16x16x32_bf16"


HFLAG_OFF = 32 << 20
XFLAG_OFF = (32 << 20) + 65536
WS_RANGE = XCH_OFF + (8 << 20)

def kernel(A, opt):
    name = "standalone__glu_gated_swiglu__prompt_kernel"
    VOW, VOX, VWR, VXR = 224, 232, 240, 247
    VPX, VP2, VLANE = 249, 250, 251
    T0, T1, T2, T3 = 252, 253, 254, 255
    VPW = T3
    VTOK = T2
    WSET = [0, 56]; XSET = [112, 128]; NA = 144
    sWAVE, sKX, sKW, sMX, sMW, sDR, sCNT, sT, sXW, sWW = 32, 33, 34, 35, 36, 37, 38, 39, 40, 41
    sIW, sPF2, sC0, sSL, sRS = 42, 43, 44, 46, 47
    sIDX, sMT, sNT, sBLK = 48, 49, 50, 51
    sGW, sPX, sPW, sIX = 56, 57, 58, 59
    sC1 = 18
    sXB, sXS = 62, 63
    A.raw(".text"); A.raw(f".globl {name}"); A.raw(".p2align 8"); A.raw(f".type {name},@function")
    A.label(name)
    A("s_cmp_ge_u32 s2, 256")
    A("s_cbranch_scc1 L_end")
    stamp(A, opt, 0); stamp(A, opt, 1, True)
    A("s_load_dwordx8 s[4:11], s[0:1], 0")
    A("s_load_dwordx4 s[60:63], s[0:1], 32")
    A("s_load_dwordx2 s[16:17], s[0:1], 48")
    A(f"v_lshrrev_b32 v{T0}, 6, v0")
    A(f"v_and_b32 v{VLANE}, 63, v0")
    A("s_and_b32 s3, s2, 7")
    A(f"v_readfirstlane_b32 s{sWAVE}, v{T0}")
    A(f"s_lshr_b32 s{sIDX}, s2, 3")
    A(f"s_and_b32 s{sMT}, s{sIDX}, 7")
    A(f"s_lshl_b32 s{sNT}, s3, 2")
    A(f"s_lshr_b32 s{sBLK}, s{sIDX}, 3")
    A(f"s_add_u32 s{sNT}, s{sNT}, s{sBLK}")
    A(f"v_lshrrev_b32 v{T0}, 4, v{VLANE}")
    A(f"v_bfe_u32 v{T1}, v{VLANE}, 1, 3")
    A(f"v_xor_b32 v{T1}, v{T1}, v{T0}")
    A(f"v_and_b32 v{T2}, 1, v{VLANE}")
    A(f"v_lshlrev_b32 v{T2}, 4, v{T2}")
    A("s_movk_i32 s55, 7168")
    A(f"v_mad_u32_u24 v{T2}, v{T0}, s55, v{T2}")
    A(f"s_and_b32 s52, s{sWAVE}, 1")
    A("s_mul_i32 s53, s52, 229376")
    A(f"s_mul_i32 s54, s{sNT}, 224")
    A("s_add_u32 s53, s53, s54")
    A(f"v_add_u32 v{T2}, s53, v{T2}")
    A("v_mov_b32 v0, 0x40000000")
    for pat in range(2):
        d = 1+pat
        if pat: A(f"v_xor_b32 v{T1}, 4, v{T1}")
        A(f"v_lshl_add_u32 v{d}, v{T1}, 5, v{T2}")
        A(f"v_cmp_eq_u32 vcc, 7, v{T1}")
        A("s_nop 1")
        A(f"v_cndmask_b32 v{d}, v{d}, v0, vcc")
    for i in range(8):
        A(f"v_add_u32 v{VOW+i}, {i*4*7168 - (i & 3)*1024}, v{1+((i>>1)&1)}")
    A(f"v_lshrrev_b32 v{T0}, 3, v{VLANE}")
    A(f"v_and_b32 v{T1}, 7, v{VLANE}")
    A(f"v_lshrrev_b32 v{T2}, 1, v{T0}")
    A(f"v_xor_b32 v{T1}, v{T1}, v{T2}")
    A(f"v_lshlrev_b32 v{T1}, 4, v{T1}")
    A(f"v_lshl_add_u32 v{T1}, v{T0}, 11, v{T1}")
    A(f"s_lshl_b32 s{sBLK}, s{sMT}, 2")
    A(f"s_add_u32 s{sBLK}, s{sBLK}, s{sWAVE}")
    A(f"s_lshl_b32 s53, s{sBLK}, 17")
    A(f"v_add_u32 v{T1}, s53, v{T1}")
    A(f"v_xor_b32 v{T2}, 64, v{T1}")
    for i in range(8):
        A(f"v_add_u32 v{VOX+i}, {i*16384 - (i & 3)*1024}, v{T2 if i & 1 else T1}")
    A(f"s_lshl_b32 s{sXW}, s{sWAVE}, 13")
    A(f"s_add_u32 s{sWW}, s{sXW}, {WBASE}")
    EP = opt['ep']
    if EP:
        A(f"s_lshl_b32 s57, s{sIDX}, 1")
        A("s_add_u32 s57, s57, s52")
        A("s_mul_i32 s57, s57, 7168")
        A("s_lshr_b32 s58, s3, 1")
        A("s_mul_i32 s58, s58, 1792")
        A("s_add_u32 s57, s57, s58")
        A(f"s_add_u32 s57, s57, {EP[2]*458752}")
        if EP[0] == 16:
            A(f"v_lshlrev_b32 v4, 4, v{VLANE}")
            A("v_add_u32 v4, s57, v4")
            A(f"v_cmp_gt_u32 vcc, 48, v{VLANE}")
            A("s_nop 1")
            A("v_cndmask_b32 v5, v0, v4, vcc")
        else:
            n = 1792 // EP[0]; sh = 6 if EP[0] == 64 else 7
            A(f"v_mov_b32 v4, v{VLANE}")
            A("v_mov_b32 v5, 0")
            for r in range(56 // n - 1):
                A(f"v_cmp_le_u32 vcc, {n}, v4")
                A(f"v_subrev_u32 v6, {n}, v4")
                A(f"v_add_u32 v7, 458752, v5")
                A("v_cndmask_b32 v4, v4, v6, vcc")
                A("v_cndmask_b32 v5, v5, v7, vcc")
            A(f"v_lshl_add_u32 v4, v4, {sh}, v5")
            A("v_add_u32 v4, s57, v4")
            A(f"v_cmp_gt_u32 vcc, 56, v{VLANE}")
            A("s_nop 1")
            A("v_cndmask_b32 v4, v0, v4, vcc")
    def early_pf():
        n = 0
        if EP[0] == 16:
            for st in range(EP[3]):
                A(f"s_mov_b32 s57, {st*458752}")
                A(f"buffer_load_dwordx4 a[{NA+8}:{NA+11}], v4, s[24:27], s57 offen")
                A(f"buffer_load_dwordx4 a[{NA+8}:{NA+11}], v5, s[24:27], s57 offen offset:1024")
                n += 2
        else:
            per = 56 // (1792 // EP[0])
            for st in range(0, EP[3], per):
                A(f"s_mov_b32 s57, {st*458752}")
                A(f"buffer_load_dword a{NA+8}, v4, s[24:27], s57 offen{opt['pol_pw']}")
                n += 1
        return n
    A("s_waitcnt lgkmcnt(0)")
    if opt['wsoff']:
        A(f"s_add_u32 s16, s16, {opt['wsoff'] << 20}")
        A("s_addc_u32 s17, s17, 0")
    A(f"s_cmp_ge_u32 s{sWAVE}, 2")
    A("s_cselect_b32 s24, s8, s6")
    A("s_cselect_b32 s25, s9, s7")
    A("s_and_b32 s25, s25, 0xffff")
    A(f"s_mov_b32 s26, {W_BYTES}")
    A("s_mov_b32 s27, 0x00020000")
    A("s_mov_b32 s20, s4")
    A("s_and_b32 s21, s5, 0xffff")
    A(f"s_mov_b32 s22, {X_BYTES}")
    A("s_mov_b32 s23, 0x00020000")
    def dma_w(i): return f"buffer_load_dwordx4 v{VOW+i}, s[24:27], s{sKW} offen offset:{(i&3)*1024}{opt['pol_w']} lds"
    def dma_x(i): return f"buffer_load_dwordx4 v{VOX+i}, s[20:23], s{sKX} offen offset:{(i&3)*1024}{opt['pol_x']} lds"
    def issue_stage(st, which="wx"):
        if "w" in which:
            A(f"s_mov_b32 s{sKW}, {st*64*7168*opt['fw']}")
            for h in range(2):
                A(f"s_add_u32 m0, s{sWW}, {st*WSLOT+h*4096}")
                A("s_nop 0")
                for i in range(4*h, 4*h+4): A(dma_w(i))
        if "x" in which:
            A(f"s_mov_b32 s{sKX}, {st*128*opt['fx']}")
            for h in range(2):
                A(f"s_add_u32 m0, s{sXW}, {st*32768+h*4096}")
                A("s_nop 0")
                for i in range(4*h, 4*h+4): A(dma_x(i))
    NE = 0
    if EP and EP[1] == 0: early_pf()
    issue_stage(0)
    if EP and EP[1] == 1: NE = early_pf()
    if not opt.get('rt'): stamp(A, opt, 2)
    A(f"v_and_b32 v{T0}, 15, v{VLANE}")
    A(f"v_lshrrev_b32 v{T1}, 4, v{VLANE}")
    A(f"v_bfe_u32 v{T2}, v{VLANE}, 1, 3")
    A(f"v_xor_b32 v{T2}, v{T2}, v{T1}")
    A(f"v_lshlrev_b32 v{T2}, 4, v{T2}")
    A(f"v_lshl_add_u32 v{T2}, v{T0}, 7, v{T2}")
    A(f"v_add_u32 v{VXR}, s{sXW}, v{T2}")
    A(f"v_xor_b32 v{VXR+1}, 64, v{VXR}")
    A(f"v_bfe_u32 v{T0}, v{VLANE}, 2, 3")
    A(f"v_bfe_u32 v{T2}, v{VLANE}, 2, 2")
    A(f"v_lshl_add_u32 v{T2}, v{T1}, 3, v{T2}")
    A(f"v_lshlrev_b32 v{T2}, 8, v{T2}")
    A(f"v_and_b32 v{T3}, 3, v{VLANE}")
    A(f"v_lshl_add_u32 v{T2}, v{T3}, 3, v{T2}")
    A(f"v_add_u32 v{T2}, {WBASE}, v{T2}")
    for fb in range(7):
        A(f"v_xor_b32 v{T3}, {fb}, v{T0}")
        A(f"v_lshl_add_u32 v{VWR+fb}, v{T3}, 5, v{T2}")
    A("s_mov_b32 s12, s10")
    A("s_and_b32 s13, s11, 0xffff")
    A(f"s_mov_b32 s14, {W_BYTES}")
    A("s_mov_b32 s15, 0x00020000")
    A(f"s_lshl_b32 s{sGW}, s2, 2")
    A(f"s_add_u32 s{sGW}, s{sGW}, s{sWAVE}")
    A(f"s_lshl_b32 s57, s{sIDX}, 2")
    A(f"s_add_u32 s57, s57, s{sWAVE}")
    A("s_lshl_b32 s57, s57, 15")
    A(f"v_lshrrev_b32 v{T0}, 1, v{VLANE}")
    A(f"v_lshlrev_b32 v{T0}, 11, v{T0}")
    A(f"v_and_b32 v{T1}, 1, v{VLANE}")
    A(f"v_lshl_add_u32 v{T0}, v{T1}, 6, v{T0}")
    A(f"v_add_u32 v{T0}, s57, v{T0}")
    A(f"v_cmp_gt_u32 vcc, 32, v{VLANE}")
    A(f"s_lshl_b32 s57, s{sIDX}, 1")
    A("s_add_u32 s57, s57, s52")
    A(f"v_cndmask_b32 v{VPX}, v0, v{T0}, vcc")
    A("s_mul_i32 s57, s57, 7168")
    A("s_mul_i32 s58, s3, 896")
    A("s_add_u32 s57, s57, s58")
    A(f"v_lshlrev_b32 v{T1}, 6, v{VLANE}")
    A(f"v_add_u32 v{T0}, s57, v{T1}")
    A(f"v_cmp_gt_u32 vcc, 14, v{VLANE}")
    A(f"s_lshl_b32 s57, s{sGW}, 9")
    A(f"s_mov_b32 s{sPF2}, 0")
    A(f"v_cndmask_b32 v{VPW}, v0, v{T0}, vcc")
    A(f"v_add_u32 v{T0}, s57, v{T1}")
    A(f"v_cmp_gt_u32 vcc, 8, v{VLANE}")
    A("s_mov_b32 s28, s16")
    A("s_and_b32 s29, s17, 0xffff")
    A(f"v_cndmask_b32 v{VP2}, v0, v{T0}, vcc")
    A(f"s_mov_b32 s30, {WS_RANGE}")
    A("s_mov_b32 s31, 0x00020000")
    A(f"s_mov_b32 s{sC0}, 0xbfb8aa3b")
    A(f"s_mov_b32 s{sC0+1}, 0xbfb8aa3b")
    A(f"s_mov_b32 s{sC1}, 1.0")
    A(f"s_mov_b32 s{sC1+1}, 1.0")
    A("s_mov_b32 s52, s62")
    A("s_and_b32 s53, s63, 0xffff")
    A("s_mov_b32 s54, 4")
    A("s_mov_b32 s55, 0x00020000")
    for i in range(4): A(f"v_accvgpr_write_b32 a{NA-4+i}, 0")
    A(f"v_lshlrev_b32 v{T1}, 2, v{VLANE}")
    A(f"v_lshlrev_b32 v{T2}, 4, v{VLANE}")
    A(f"s_lshl_b32 s{sXB}, s{sGW}, 13")
    A(f"s_add_u32 s{sXB}, s{sXB}, {XCH_OFF}")
    PFD = opt['pf_dist']
    def pf_x(so): return f"buffer_load_dword a{NA}, v{VPX}, s[20:23], {so} offen"
    def pf_w(so): return f"buffer_load_dword a{NA}, v{VPW}, s[24:27], {so} offen{opt['pol_pw']}"
    def pf_2(): return f"buffer_load_dword a{NA}, v{VP2}, s[12:15], s{sPF2} offen"
    for t in range(14):
        A(f"v_mfma_f32_32x32x16_bf16 v[{16*t}:{16*t+15}], a[{NA-4}:{NA-1}], a[{NA-4}:{NA-1}], 0")
    def acc(fb, gu, mb): return 4*((fb*2+gu)*4+mb)
    def mfmas(st):
        out = []
        for fb in range(7):
            for gu in range(2):
                for mb in range(4):
                    c = acc(fb, gu, mb); w = WSET[st]+4*(fb*2+gu); x = XSET[st]+4*mb
                    out.append(f"{MF} v[{c}:{c+3}], a[{w}:{w+3}], a[{x}:{x+3}], v[{c}:{c+3}]")
        return out
    def wreads(st, ks):
        out = []
        for fb in range(7):
            for gu in range(2):
                w = WSET[st]+4*(fb*2+gu); off = ks*8192 + gu*16384
                out.append(f"ds_read_b64_tr_b16 a[{w}:{w+1}], v{VWR+fb} offset:{off}")
                out.append(f"ds_read_b64_tr_b16 a[{w+2}:{w+3}], v{VWR+fb} offset:{off+1024}")
        return out
    def xreads(st, ks):
        return [f"ds_read_b128 a[{XSET[st]+4*mb}:{XSET[st]+4*mb+3}], v{VXR+ks} offset:{mb*2048}" for mb in range(4)]
    NPF = 3
    NV = 16 + 2*NPF
    JIT = opt['jit']
    issue_stage(1, "w" if JIT else "wx")
    if EP and EP[1] == 2: NE = early_pf()
    def code_pf(tag, lo, n):
        A("s_getpc_b64 s[6:7]")
        A.label(f"L_pc{tag}")
        A(f"s_lshl_b32 s8, s{sIDX}, 2")
        A(f"s_add_u32 s8, s8, s{sWAVE}")
        A("s_lshl_b32 s8, s8, 6")
        A(f"s_add_u32 s8, s8, {lo} - L_pc{tag}")
        A("s_add_u32 s6, s6, s8")
        A("s_addc_u32 s7, s7, 0")
        for k in range(n): A(f"s_load_dword s8, s[6:7], {8192*k}")
    if opt['cpf'] & 1: code_pf("a", "L1_loop", opt['cpf_n'])
    A(f"s_cmp_lg_u32 s{sGW}, 0")
    A("s_cbranch_scc1 L_notok")
    A("s_memrealtime s[4:5]")
    A("s_waitcnt lgkmcnt(0)")
    A("s_or_b32 s4, s4, 1")
    A(f"v_mov_b32 v{T0}, s4")
    A(f"buffer_store_dword v{T0}, v{T1}, s[52:55], 0 offen sc1")
    A.label("L_notok")
    A(f"s_mov_b32 s{sKW}, {2*64*7168*opt['fw']}")
    A(f"s_mov_b32 s{sKX}, {(128 if JIT else 256)*opt['fx']}")
    A(f"s_mov_b32 s{sIW}, {64*7168*opt['fw']}")
    A(f"s_mov_b32 s{sIX}, {128*opt['fx']}")
    A(f"s_mov_b32 s{sPX}, {PFD*128 if opt['fx'] else 0x40000000}")
    A(f"s_mov_b32 s{sPW}, {PFD*64*7168 if opt['fw'] else 0x40000000}")
    if not opt['f2']: A(f"s_mov_b32 s{sPF2}, 0x40000000")
    A(f"s_mov_b32 s{sMX}, s{sXW}")
    A(f"s_add_u32 s{sMW}, s{sWW}, {2*WSLOT}")
    A(f"s_mov_b32 s{sRS}, 0")
    A(f"s_mov_b32 s{sSL}, {WSLOT}")
    A(f"s_mov_b32 s{sCNT}, 0")
    if not opt.get('rt'): stamp(A, opt, 3)
    A(f"s_waitcnt vmcnt({(8 if JIT else 16) + NE})")
    A("s_barrier")
    stamp(A, opt, 4); stamp(A, opt, 8, True)
    for r in xreads(0, 0) + wreads(0, 0): A(r)
    rg = opt['rd_gaps']
    def q1(first):
        pre = []
        if first and JIT:
            A(f"s_add_u32 m0, s{sXW}, 32768")
            A("s_nop 0")
            for i in range(4): A(dma_x(i))
            A(f"s_add_u32 m0, s{sXW}, {32768+4096}")
        A("s_waitcnt lgkmcnt(0)")
        f = place(xreads(1, 1) + wreads(1, 1), rg)
        if first:
            dg = list(opt['q1f_dma']); nw = 8
            if JIT:
                dg = list(opt['q1j_dma'])
                f += place([dma_x(i) for i in range(4, 8)], dg[:4]); f += [(dg[3], f"s_mov_b32 s{sKX}, 256")]
                dg = dg[4:]
            f += [(dg[0]-1, f"s_mov_b32 m0, s{sMW}"), (dg[4]-1, f"s_add_u32 m0, s{sMW}, 4096")]
        else:
            dg = opt['q1_dma']; nw = 2
        f += place([dma_w(i) for i in range(8-nw, 8)], dg[0:nw])
        xg = dg[nw:nw+8]; pg = dg[nw+8:]
        f += [(xg[0]-2, "s_waitcnt lgkmcnt(8)"), (xg[0]-1, f"s_mov_b32 m0, s{sMX}"), (xg[4]-1, f"s_add_u32 m0, s{sMX}, 4096")]
        assert sum(1 for g in rg if g <= xg[0]-2) >= 12 and xg[0]-1 > dg[nw-1] and xg[4]-1 > xg[3]
        f += place([dma_x(i) for i in range(8)], xg)
        f += place([pf_w(f"s{sPW}"), pf_x(f"s{sPX}"), pf_2()], pg)
        b = max(rg)+1
        w = dg[nw-1]
        f += [(w+1, f"s_add_u32 s{sKW}, s{sKW}, s{sIW}"),
              (w+1, f"s_lshl_b32 s{sT}, s{sRS}, 15"), (w+2, f"s_add_u32 s{sMW}, s{sWW}, s{sT}"),
              (w+2, f"s_add_u32 s{sRS}, s{sRS}, 1"), (w+3, f"s_cmp_eq_u32 s{sRS}, 3"),
              (w+3, f"s_cselect_b32 s{sDR}, {(-2*WSLOT) & 0xffffffff}, s{sSL}"), (w+3, f"s_cselect_b32 s{sRS}, 0, s{sRS}")]
        assert w+3 < b
        for k in range(7):
            f.append((b+k, f"v_add_u32 v{VWR+k}, s{sDR}, v{VWR+k}"))
        f += [(b+7, f"v_xor_b32 v{VXR}, 0x8000, v{VXR}"), (b+8, f"v_xor_b32 v{VXR+1}, 0x8000, v{VXR+1}")]
        e = xg[7]+1
        f += [(e, f"s_xor_b32 s{sMX}, s{sMX}, 0x8000"), (e, f"s_add_u32 s{sKX}, s{sKX}, s{sIX}")]
        e = max(dg)+1
        assert e+1 <= 55 and b+8 <= 55
        f += [(e, f"s_add_u32 s{sPW}, s{sPW}, {64*7168}"), (e, f"s_add_u32 s{sPF2}, s{sPF2}, 524288"), (e, f"s_add_u32 s{sPX}, s{sPX}, 128"),
              (e+1, f"s_cmp_ge_u32 s{sPX}, 2048"), (e+1, f"s_cselect_b32 s{sPX}, 0x40000000, s{sPX}"),
              (55, f"s_add_u32 s{sCNT}, s{sCNT}, 1"), (55, f"s_cmp_lt_u32 s{sCNT}, 14")]
        emit_phase(A, mfmas(0), f)
    q1(True)
    A(f"s_waitcnt vmcnt({16+NPF + (NE if (EP and EP[1] == 2 and not JIT) else 0)}) lgkmcnt(0)")
    A("s_branch L1_bar")
    A.raw(".p2align 6")
    A.label("L1_loop")
    A(f"s_waitcnt vmcnt({NV}) lgkmcnt(0)")
    A.label("L1_bar")
    A("s_barrier")
    if opt.get('pp'):
        A(f"s_mov_b32 m0, s{sCNT}"); A("s_nop 3"); A(f"v_writelane_b32 v{T0}, s96, m0")
        A("s_memtime s[96:97]")
    f = place(xreads(0, 0) + wreads(0, 0), rg)
    dg = opt['q0_dma']
    f += [(dg[0]-1, f"s_mov_b32 m0, s{sMW}"), (dg[4]-1, f"s_add_u32 m0, s{sMW}, 4096")]
    f += place([dma_w(i) for i in range(6)], dg)
    emit_phase(A, mfmas(1), f)
    q1(False)
    A("s_cbranch_scc1 L1_loop")
    sKH2, sMT2, sNT2 = 4, 5, 6
    def ppstamp(k):
        if opt.get('pp'):
            A(f"v_writelane_b32 v{T0}, s96, {k}")
            A("s_memtime s[96:97]")
    def dma2(i): return f"buffer_load_dwordx4 v{VOW+i}, s[20:23], s{sWW} offen offset:{(i&3)*1024} lds"
    def dma2_group(gaps, m0base, so):
        return [(gaps[0]-1, f"s_add_u32 m0, s{sXW}, {m0base}"), (gaps[0]-1, f"s_add_u32 s{sWW}, s{sGB}, {so}"),
                (gaps[4]-1, f"s_add_u32 m0, s{sXW}, {m0base+4096}")] + place([dma2(i) for i in range(8)], gaps)
    VH, Z3, Z0, Z1, Z2, VPO, VPR = VOX, VOX+1, VOX+2, VOX+3, VOX+4, VOX+5, VOX+6
    REG = [98304, 131072, 0, 32768]
    sG0, sGB = 57, 58
    sw = [f"s_lshr_b32 s{sKH2}, s3, 2", f"s_and_b32 s{sG0}, s3, 3", f"s_lshl_b32 s{sMT2}, s{sG0}, 2",
          f"s_and_b32 s{sNT2}, s{sIDX}, 3", f"s_add_u32 s{sMT2}, s{sMT2}, s{sNT2}", f"s_lshr_b32 s{sNT2}, s{sIDX}, 2",
          f"s_mul_i32 s7, s{sKH2}, {W_BYTES//2}", "s_add_u32 s20, s10, s7", "s_addc_u32 s21, s11, 0", "s_and_b32 s21, s21, 0xffff",
          f"s_mov_b32 s22, {W_BYTES//2}",
          f"s_lshl_b32 s7, s{sWAVE}, 16", f"s_lshl_b32 s8, s{sNT2}, 8", "s_add_u32 s7, s7, s8"]
    vw = [f"v_lshrrev_b32 v{Z0}, 4, v{VLANE}", f"v_bfe_u32 v{Z1}, v{VLANE}, 1, 3", f"v_xor_b32 v{Z1}, v{Z1}, v{Z0}",
          f"v_and_b32 v{Z2}, 1, v{VLANE}", f"v_lshlrev_b32 v{Z2}, 4, v{Z2}", f"v_lshl_add_u32 v{Z2}, v{Z0}, 11, v{Z2}",
          f"v_lshl_add_u32 v{Z2}, v{Z1}, 5, v{Z2}", f"v_add_u32 v{Z2}, s7, v{Z2}", f"v_xor_b32 v{Z0}, 128, v{Z2}"]
    vw += [f"v_add_u32 v{VOW+i}, {i*8192 - (i & 3)*1024}, v{Z0 if (i >> 1) & 1 else Z2}" for i in range(8)]
    A(f"s_waitcnt vmcnt({NV}) lgkmcnt(0)")
    A("s_barrier")
    ppstamp(14)
    f = place(xreads(0, 0) + wreads(0, 0), rg)
    f += [(i//2, x) for i, x in enumerate(sw)]
    f += [(i+1, x) for i, x in enumerate(vw)]
    f += [(7, f"s_lshl_b32 s8, s{sIDX}, 2"), (7, f"s_add_u32 s8, s8, s{sWAVE}"), (8, f"s_mul_i32 s{sGB}, s{sG0}, 917504"), (8, "s_lshl_b32 s8, s8, 13"), (9, f"s_add_u32 s8, s8, s{sGB}"), (9, f"s_sub_u32 s9, s8, {28*131072}"),
          (10, "s_cselect_b32 s8, s8, s9"), (10, "s_add_u32 s9, s8, 4096"),
          (0, f"v_lshlrev_b32 v{Z3}, 6, v{VLANE}"),
          (11, f"buffer_load_dword a{NA}, v{Z3}, s[20:23], s8 offen"), (15, f"buffer_load_dword a{NA}, v{Z3}, s[20:23], s9 offen")]
    NXW = 0
    if opt['xwarm']:
        NXW = opt['xwarm']
        f += [(19, f"v_lshlrev_b32 v{Z3}, 7, v{VLANE}")]
        f += [(23+4*i, f"buffer_load_dword a{NA}, v{Z3}, s[28:31], s{sXB} offen offset:{64*i}") for i in range(NXW)]
    emit_phase(A, mfmas(1), f)
    A("s_waitcnt lgkmcnt(0)")
    f = place(xreads(1, 1) + wreads(1, 1), rg)
    f += dma2_group(opt['w2a'], REG[0], 0)
    b = max(rg)+1
    f += [(b+k, f"v_add_u32 v{VWR+k}, {(-2*WSLOT) & 0xffffffff}, v{VWR+k}") for k in range(7)]
    f += [(b+7, f"v_xor_b32 v{VXR}, 0x8000, v{VXR}"), (b+8, f"v_xor_b32 v{VXR+1}, 0x8000, v{VXR+1}")]
    emit_phase(A, mfmas(0), f)
    A(f"s_waitcnt vmcnt({NPF+10+NXW}) lgkmcnt(0)")
    A("s_barrier")
    ppstamp(15)
    f = place(xreads(0, 0) + wreads(0, 0), rg)
    f += dma2_group(opt['w2b'], REG[1], 262144)
    f += [(13, f"s_lshl_b32 s8, s{sMT2}, 2"), (14, f"s_add_u32 s8, s8, s{sKH2}"), (15, "s_lshl_b32 s8, s8, 7"), (16, f"s_add_u32 s8, s8, {HFLAG_OFF}"),
          (13, f"v_and_b32 v{VPO}, 60, v{T1}"), (14, f"v_bfe_u32 v{Z0}, v{VLANE}, 4, 1"), (15, f"v_lshl_add_u32 v{VPO}, v{Z0}, 8, v{VPO}"),
          (17, f"v_add_u32 v{VPO}, s8, v{VPO}")]
    if opt['fwarm']: f += [(35, f"buffer_load_dword v{VPR}, v{VPO}, s[28:31], 0 offen sc1")]
    f += [(0, f"s_lshl_b32 s7, s{sBLK}, 1"), (1, f"s_mul_i32 s7, s7, {H_MB_STRIDE}"), (4, f"s_mul_i32 s8, s{sNT}, 7168"),
          (5, "s_add_u32 s7, s7, s8"), (8, f"v_add_u32 v{VH}, s7, v{T2}")]
    f += [(9, f"s_mov_b32 s42, s{sXB}"), (12, "s_add_u32 s43, s42, 4096")]
    f += [(54, f"buffer_load_dword v{VTOK}, v{T1}, s[52:55], 0 offen sc1")]
    emit_phase(A, mfmas(1), f)
    A.label("L1_done")
    stamp(A, opt, 5); stamp(A, opt, 9, True)
    A("s_waitcnt lgkmcnt(0)")
    def epi(fb, p):
        o = []
        g = acc(fb, 0, 2*p); u = acc(fb, 1, 2*p)
        for i in range(4): o.append(f"v_pk_mul_f32 v[{u+2*i}:{u+2*i+1}], v[{g+2*i}:{g+2*i+1}], v[{u+2*i}:{u+2*i+1}]")
        for i in range(4): o.append(f"v_pk_mul_f32 v[{g+2*i}:{g+2*i+1}], v[{g+2*i}:{g+2*i+1}], s[{sC0}:{sC0+1}]")
        for i in range(8): o.append(f"v_exp_f32 v{g+i}, v{g+i}")
        for i in range(4): o.append(f"v_pk_add_f32 v[{g+2*i}:{g+2*i+1}], v[{g+2*i}:{g+2*i+1}], s[{sC1}:{sC1+1}]")
        for i in range(8): o.append(f"v_rcp_f32 v{g+i}, v{g+i}")
        for i in range(4): o.append(f"v_pk_mul_f32 v[{u+2*i}:{u+2*i+1}], v[{g+2*i}:{g+2*i+1}], v[{u+2*i}:{u+2*i+1}]")
        for i in range(4): o.append(f"v_cvt_pk_bf16_f32 v{g+i}, v{u+2*i}, v{u+2*i+1}")
        o.append(f"s_mov_b32 s{sT}, {p*H_MB_STRIDE + (fb//4)*4096}")
        o.append("s_nop 0")
        o.append(f"v_permlane16_swap_b32 v{g}, v{g+2}")
        o.append(f"v_permlane16_swap_b32 v{g+1}, v{g+3}")
        o.append(f"buffer_store_dwordx4 v[{g}:{g+3}], v{VH}, s[28:31], s{sT} offen offset:{(fb%4)*1024} sc1")
        return o
    m0s, m1s = mfmas(0), mfmas(1)
    order = [('A', 0)]
    for k in range(6): order += [('A', k+1), ('B', k)]
    order += [('B', 6)]
    ml = []; done = {}
    f = [(i, r) for i, r in enumerate(xreads(1, 1) + wreads(1, 1))]
    for kind, fb in order:
        if kind == 'B':
            issued = min(32, len(ml)); need = 8 + 4*fb
            f.append((len(ml)-1, f"s_waitcnt lgkmcnt({min(15, issued-need)})"))
        ml += (m0s if kind == 'A' else m1s)[8*fb:8*fb+8]
        if kind == 'B': done[fb] = len(ml)
    stream = [(fb, ins) for fb in range(7) for p in range(2) for ins in epi(fb, p)]
    pos = 0
    if opt['epi_plain']:
        nfb = opt['epi_plain']
        pre = []
        for fb in range(nfb):
            for p in range(2):
                g = acc(fb, 0, 2*p); u = acc(fb, 1, 2*p)
                pre += [(fb, f"v_mul_f32 v{u+i}, v{g+i}, v{u+i}") for i in range(8)]
                pre += [(fb, f"v_mul_f32 v{g+i}, s{sC0}, v{g+i}") for i in range(8)]
        rest = [(7, ins) for fb in range(7) for p in range(2) for ins in (epi(fb, p)[8:] if fb < nfb else epi(fb, p))]
        stream = pre + rest; done[7] = 10**6
    for gap in range(done[0]+2, len(ml)):
        for _ in range(opt['epi_n']):
            if done[stream[pos][0]] + 2 <= gap:
                f.append((gap, stream[pos][1])); pos += 1
    emit_phase(A, ml, f)
    if opt['cpf'] & 2:
        A("s_getpc_b64 s[10:11]")
        A.label("L_pcb")
        A(f"s_lshl_b32 s8, s{sIDX}, 2")
        A(f"s_add_u32 s8, s8, s{sWAVE}")
        A("s_lshl_b32 s8, s8, 6")
        A("s_add_u32 s8, s8, L_hgo - L_pcb")
        A("s_add_u32 s10, s10, s8")
        A("s_addc_u32 s11, s11, 0")
        for k in range(2): A(f"s_load_dword s63, s[10:11], {8192*k}")
    assert stream[pos][0] <= 4 or stream[pos][0] == 7
    for fb, ins in stream[pos:]: A(ins)
    poll = f"buffer_load_dword v{VPR}, v{VPO}, s[28:31], 0 offen sc1"
    A(poll)
    stamp(A, opt, 6)
    R = 8
    ACC = 0; WS = [64, 96]; VWD = 128; VRD = 132
    VHL, VO, VX, VF = 148, 149, 150, 151
    U0, U1, U2, U3 = 152, 153, 154, 155
    VSO = 157
    sRDY, sNP = 46, 47
    sKW2, sKH, sM, sTOK, sMB = 33, 34, 35, 36, 37
    def slot_addr(k): return REG[k >> 1] + (k & 1)*16384
    A(f"s_lshl_b32 s7, s{sWAVE}, 15")
    for i in range(4): A(f"v_subrev_u32 v{VWD+i}, s7, v{VOW+i}")
    A(f"v_and_b32 v{U0}, 15, v{VLANE}")
    A(f"v_bfe_u32 v{U1}, v{VLANE}, 4, 1")
    A(f"v_lshl_add_u32 v{U0}, v{U1}, 5, v{U0}")
    A(f"v_lshlrev_b32 v{U0}, 4, v{U0}")
    A(f"v_lshrrev_b32 v{U1}, 5, v{VLANE}")
    A(f"v_lshl_add_u32 v{VHL}, v{U1}, 10, v{U0}")
    A(f"s_lshl_b32 s{sM}, s{sWAVE}, 12")
    A(f"s_lshl_b32 s{sMB}, s{sMT2}, 2")
    A(f"s_add_u32 s{sMB}, s{sMB}, s{sWAVE}")
    A(f"s_mul_i32 s7, s{sMB}, {H_MB_STRIDE}")
    A(f"s_mul_i32 s8, s{sKH2}, {H_MB_STRIDE//2}")
    A("s_add_u32 s7, s7, s8")
    A("s_add_u32 s24, s16, s7")
    A("s_addc_u32 s25, s17, 0")
    A("s_and_b32 s25, s25, 0xffff")
    A(f"s_mov_b32 s26, {H_MB_STRIDE//2}")
    A("s_mov_b32 s27, 0x00020000")
    A(f"v_lshrrev_b32 v{U1}, 4, v{VLANE}")
    A(f"v_bfe_u32 v{U0}, v{VLANE}, 2, 3")
    A(f"s_lshl_b32 s7, s{sKH2}, 2")
    A("s_xor_b32 s7, s7, 4")
    A(f"v_xor_b32 v{U0}, s7, v{U0}")
    A(f"v_bfe_u32 v{U2}, v{VLANE}, 2, 2")
    A(f"v_lshl_add_u32 v{U2}, v{U1}, 3, v{U2}")
    A(f"v_lshlrev_b32 v{U2}, 8, v{U2}")
    A(f"v_and_b32 v{U3}, 3, v{VLANE}")
    A(f"v_lshl_add_u32 v{U2}, v{U3}, 3, v{U2}")
    for nb in range(8):
        A(f"v_xor_b32 v{U3}, {nb}, v{U0}")
        A(f"v_lshl_add_u32 v{VRD+nb}, v{U3}, 5, v{U2}")
        A(f"v_add_u32 v{VRD+8+nb}, 98304, v{VRD+nb}")
    def hreg(slot, ks, mb): return slot*16 + ks*8 + mb*4
    A(f"s_lshr_b32 s7, s{sNT}, 4")
    A(f"s_lshl_b32 s8, s{sBLK}, 1")
    A("s_add_u32 s7, s7, s8")
    A("s_lshl_b32 s7, s7, 7")
    A(f"s_and_b32 s8, s{sNT}, 15")
    A("s_lshl_b32 s8, s8, 2")
    A("s_add_u32 s7, s7, s8")
    A(f"s_add_u32 s7, s7, {HFLAG_OFF}")
    A(f"v_mov_b32 v{VSO}, s7")
    A(f"v_mov_b32 v{U1}, {WBASE+224}")
    A(f"s_mov_b32 s{sCNT}, 0")
    if opt.get('pp'): A("s_mov_b32 s98, 16")
    A("s_mov_b32 s9, 0x40000")
    A("s_waitcnt vmcnt(1)")
    stamp(A, opt, 7)
    A.label("L_tok")
    A(f"v_readfirstlane_b32 s{sTOK}, v{VTOK}")
    A("s_nop 0")
    A(f"s_cmp_lg_u32 s{sTOK}, 0")
    A("s_cbranch_scc1 L_tok_ok")
    A("s_sleep 2")
    A(f"buffer_load_dword v{VTOK}, v{T1}, s[52:55], 0 offen sc1")
    A("s_waitcnt vmcnt(0)")
    A("s_sub_u32 s9, s9, 1")
    A("s_cbranch_scc0 L_tok")
    A.label("L_tok_ok")
    A("s_mov_b32 s9, 0x40000")
    A(f"v_mov_b32 v{VF}, s{sTOK}")
    A("s_mov_b64 exec, 1")
    A(f"buffer_store_dword v{VF}, v{VSO}, s[28:31], 0 offen sc1")
    A("s_mov_b64 exec, -1")
    def ready_mask():
        A(f"v_cmp_eq_u32 vcc, s{sTOK}, v{VPR}")
        A("s_nop 4")
        A("s_lshr_b32 s7, vcc_lo, 16")
        A(f"s_and_b32 s{sRDY}, s7, vcc_lo")
    A("s_barrier")
    def rd(st, slot, ks):
        out = []
        sa = slot_addr(slot)
        for nb in range(8):
            w = WS[st]+4*nb
            base = VRD + nb + (8 if sa >= 98304 else 0)
            off = (sa - 98304 if sa >= 98304 else sa) + ks*8192
            out.append(f"ds_read_b64_tr_b16 v[{w}:{w+1}], v{base} offset:{off}")
            out.append(f"ds_read_b64_tr_b16 v[{w+2}:{w+3}], v{base} offset:{off+1024}")
        return out
    for r in rd(0, 0, 0): A(r)
    NLATE = opt['late_ds']
    assert NLATE == 2
    emit_phase(A, None, dma2_group([2, 3, 4, 5, 8, 9, 10, 11], REG[2], 524288) + [(1, "s_nop 0"), (7, "s_nop 0")])
    A(f"s_lshr_b32 s7, s{sWAVE}, 1")
    A(f"s_add_u32 s7, s7, s{sG0}")
    A("s_cmp_eq_u32 s7, 4")
    A("s_cbranch_scc0 L_nowrap")
    for i in range(8): A(f"v_subrev_u32 v{VOW+i}, 131072, v{VOW+i}")
    A(f"s_mov_b32 s{sGB}, {(-786432) & 0xffffffff}")
    A.label("L_nowrap")
    emit_phase(A, None, dma2_group([2, 3, 4, 5, 8, 9, 10, 11], REG[3], 786432) + [(1, "s_nop 0"), (7, "s_nop 0")])
    A(f"s_mul_i32 s{sKH}, s{sG0}, {7*4096}")
    A(f"s_mul_i32 s{sKW2}, s{sG0}, 917504")
    A(f"s_add_u32 s{sKW2}, s{sKW2}, {8*131072}")
    A(f"s_cmp_eq_u32 s{sG0}, 3")
    A(f"s_cselect_b32 s{sKW2}, 131072, s{sKW2}")
    A(f"s_lshl_b32 s7, s{sG0}, 2")
    A("s_lshl_b32 s8, 15, s7")
    A(f"s_add_u32 s{sNP}, s7, 4")
    A(f"s_and_b32 s{sNP}, s{sNP}, 15")
    A(f"s_waitcnt vmcnt({1+8*NLATE})")
    A.label("L_dec")
    ready_mask()
    A(f"s_andn2_b32 s7, s8, s{sRDY}")
    A("s_cbranch_scc0 L_hgo")
    A("s_sleep 1")
    A(poll)
    A("s_waitcnt vmcnt(0)")
    A("s_sub_u32 s9, s9, 1")
    A("s_cbranch_scc0 L_dec")
    A.label("L_hgo")
    A("s_mov_b32 s9, 0x40000")
    stamp(A, opt, 10)
    if opt.get('rt'): stamp(A, opt, 2, True)
    def dma(i): return f"buffer_load_dwordx4 v{VWD+i}, s[20:23], s{sKW2} offen offset:{i*1024} lds"
    def hload(slot, ks, mb):
        a = hreg(slot, ks, mb)
        return f"buffer_load_dwordx4 a[{a}:{a+3}], v{VHL}, s[24:27], s{sKH} offen offset:{ks*2048+mb*256} sc1"
    HP = opt['h_pre']
    WD = opt['w_pre']
    assert HP == 4 and WD in (4, 5, 6)
    advh = [f"s_add_u32 s{sKH}, s{sKH}, 4096", f"s_cmp_eq_u32 s{sKH}, {28*4096}", f"s_cselect_b32 s{sKH}, 0, s{sKH}"]
    advw = [f"s_add_u32 s{sKW2}, s{sKW2}, 131072", f"s_cmp_eq_u32 s{sKW2}, {28*131072}", f"s_cselect_b32 s{sKW2}, 0, s{sKW2}"]
    seq = []
    def allowed(tag):
        if tag not in seq: return 63
        return len(seq) - 1 - max(i for i, t in enumerate(seq) if t == tag)
    for k in range(NLATE): seq.extend([('w', 4+2*k)]*8)
    for st in range(HP):
        for ks in range(2):
            for mb in range(2): A(hload(st, ks, mb))
        for x in advh: A(x)
        seq.extend([('h', st, 0)]*2 + [('h', st, 1)]*2)
    def mf(st, slot, ks, zero=False):
        out = []
        for nb in range(8):
            for mb in range(2):
                c = ACC+4*(nb*2+mb); w = WS[st]+4*nb; h = hreg(slot, ks, mb)
                out.append(f"{MF} v[{c}:{c+3}], v[{w}:{w+3}], a[{h}:{h+3}], " + ("0" if zero else f"v[{c}:{c+3}]"))
        return out
    def wplan(p):
        first = 4 + 2*NLATE
        if p == 0: return ([], list(range(first, WD+1)))
        return ([p+WD] if first <= p+WD < 28 else [], [])
    top = {}; mid = {}
    NP = 28 - opt['xl']
    for p in range(NP):
        top[p] = min(allowed(('w', p)), allowed(('h', p-1, 1)), 63)
        for w in wplan(p)[0]: seq += [('w', w)]*4
        mid[p] = min(allowed(('h', p, 0)), 63)
        seq += [('h', p+HP, 0)]*2 + [('h', p+HP, 1)]*2
        for w in wplan(p)[1]: seq += [('w', w)]*4
    LW = opt['lgw']; LG = 16 - 2*LW
    stubs = []
    def wgroup(w, gaps):
        return [(gaps[0]-1, f"s_add_u32 m0, s{sM}, {slot_addr(w % R)}")] + [(g, dma(i)) for i, g in enumerate(gaps)] + [(gaps[3], x) for x in advw]
    def period(ps, last):
        u = ps[0] % R
        pm = (u-1) % R; hs = (u+HP) % R
        if ps[0] > 0:
            A(f"s_waitcnt vmcnt({min(top[p] for p in ps)})")
            A("s_barrier")
        if opt.get('pp'):
            A("s_mov_b32 m0, s98"); A("s_nop 3"); A(f"v_writelane_b32 v{T0}, s96, m0")
            A("s_memtime s[96:97]")
            A("s_add_u32 s98, s98, 1")
        f = [(i, r) for i, r in enumerate(rd(0, u, 0))]
        f += [(2*nb-1, f"s_waitcnt lgkmcnt({LG})") for nb in range(0, 8, LW)]
        for w in wplan(ps[0])[0]: f += wgroup(w, opt['g2_dma'])
        if ps[0] in (3, 9):
            f += [(12, f"s_lshl_b32 s8, 15, s{sNP}"), (12, f"s_andn2_b32 s7, s8, s{sRDY}"), (12, f"s_cbranch_scc1 L2_w{ps[0]}"), (12, f"L2_b{ps[0]}:"),
                  (13, f"s_add_u32 s{sNP}, s{sNP}, 4"), (13, f"s_and_b32 s{sNP}, s{sNP}, 15")]
            stubs.append(ps[0])
        if ps[0] > 0: emit_phase(A, mf(1, pm, 1), f)
        f = [(i, r) for i, r in enumerate(rd(1, u, 1))]
        f += [(-1, f"s_waitcnt vmcnt({min(mid[p] for p in ps)}) lgkmcnt({LG})")]
        f += [(2*nb-1, f"s_waitcnt lgkmcnt({LG})") for nb in range(LW, 8, LW)]
        hg = opt['g2_h'] if ps[0] else [0, 1, 2, 3]
        f += [(g, hload(hs, i >> 1, i & 1)) for i, g in enumerate(hg)]
        f += [(14, x) for x in advh]
        for k, w in enumerate(wplan(ps[0])[1]): f += wgroup(w, [[5, 6, 7, 8], [10, 11, 12, 12], [14, 14, 15, 15]][k])
        if last:
            f += [(15, f"s_add_u32 s{sCNT}, s{sCNT}, 1"), (15, f"s_cmp_lt_u32 s{sCNT}, 2")]
        emit_phase(A, mf(0, u, 0, ps[0] == 0), f)
    for p in range(4): period([p], False)
    A.raw(".p2align 6")
    A.label("L2_loop")
    for p in range(4, 12): period([p, p+8], p == 11)
    A("s_cbranch_scc1 L2_loop")
    for p in range(20, NP): period([p], False)
    A.label("L2_done")
    def mft(st, items):
        out = []
        for j, (stg, ks, nb) in enumerate(items):
            for mb in range(2):
                c = ACC+4*(nb*2+mb); w = WS[st]+4*j; h = hreg(stg % R, ks, mb)
                out.append(f"{MF} v[{c}:{c+3}], v[{w}:{w+3}], a[{h}:{h+3}], v[{c}:{c+3}]")
        return out
    def rdt(st, items):
        out = []
        for j, (stg, ks, nb) in enumerate(items):
            r = rd(st, stg % R, ks)[2*nb:2*nb+2]
            w = WS[st]+4*j; wo = WS[st]+4*nb
            out.append(r[0].replace(f"v[{wo}:{wo+1}]", f"v[{w}:{w+1}]"))
            out.append(r[1].replace(f"v[{wo+2}:{wo+3}]", f"v[{w+2}:{w+3}]"))
        return out
    ph = [[(NP-1, 1, nb) for nb in range(8)]]
    for half in range(2):
        for stg in range(NP, 28): ph.append([(stg, ks, 4*half+nb) for ks in range(2) for nb in range(4)])
    XL = opt['xl']
    RCV, SUM, CV, keep = 160, 192, 96, 32
    def ld(i): return f"buffer_load_dwordx4 v[{RCV+4*i}:{RCV+4*i+3}], v{VX}, s[28:31], s{44 if i < 4 else 45} offen offset:{(i&3)*1024} sc1"
    hnext = NP - 1 + HP + 1
    wcov = NP - 1
    wnext = NP + WD
    late_bar = False
    for t, items in enumerate(ph):
        st = (t+1) & 1
        nxt = ph[t+1] if t+1 < len(ph) else None
        need = [allowed(('h', stg, ks)) for stg, ks, nb in items]
        bar = nxt is not None and nxt[0][0] > wcov
        if wnext < 28 and wnext - R == NP - 1 and not late_bar:
            assert t >= 1
            bar = True
        if bar and t >= 1: late_bar = True
        if bar:
            wcov = max(wcov, nxt[0][0])
            while wcov < 27 and ('w', wcov+1) in seq and allowed(('w', wcov+1)) >= opt['wage']: wcov += 1
            assert ('w', wcov) in seq
            need.append(allowed(('w', wcov)))
        f = []
        if min(need) < 63 and t <= XL: A(f"s_waitcnt vmcnt({min(need)})")
        if bar: A("s_barrier")
        if nxt:
            f += [(i, r) for i, r in enumerate(rdt(st ^ 1, nxt))]
            f += [(2*j-1, f"s_waitcnt lgkmcnt({LG})") for j in range(0, 8, LW)]
        else:
            f += [(2*j-1, f"s_waitcnt lgkmcnt({14-2*j})") for j in range(8)]
        if hnext < 28:
            assert hnext - R < NP - 1 or t >= 1
            f += [(g, hload(hnext % R, i >> 1, i & 1)) for i, g in enumerate(opt['g2_h'])]
            f += [(14, x) for x in advh]
            hs_ = [('h', hnext, 0)]*2 + [('h', hnext, 1)]*2
            hnext += 1
        else: hs_ = []
        if wnext < 28:
            assert (wnext - R) <= NP - 2 + (1 if late_bar else 0)
            f += wgroup(wnext, [1, 4, 8, 12])
            assert hs_ and opt['g2_h'] == [2, 6, 10, 14]
            for k in range(4): seq += [('w', wnext), hs_[k]]
            wnext += 1
        else: seq += hs_
        if t == XL-1:
            f += [(3, "s_xor_b32 s44, s42, 131072"), (4, "s_add_u32 s45, s44, 4096"),
                 (0, f"v_lshlrev_b32 v{VX}, 4, v{VLANE}"),
                 (10, f"v_and_b32 v{U2}, 15, v{VLANE}"), (10, f"v_lshlrev_b32 v{U2}, 11, v{U2}"),
                 (11, f"v_bfe_u32 v{U3}, v{VLANE}, 4, 1"), (11, f"v_lshl_add_u32 v{U2}, v{U3}, 5, v{U2}"),
                 (12, f"v_lshrrev_b32 v{U3}, 5, v{VLANE}"), (12, f"v_lshl_add_u32 v{U2}, v{U3}, 4, v{U2}"),
                 (1, f"s_lshl_b32 s7, s{sMB}, 16"), (1, f"s_lshl_b32 s8, s{sNT2}, 8"), (2, "s_add_u32 s7, s7, s8"),
                 (2, f"s_lshl_b32 s8, s{sKH2}, 7"), (3, "s_add_u32 s7, s7, s8"),
                 (13, f"v_add_u32 v{VO}, s7, v{U2}"),
                 (5, "s_mov_b32 s12, s60"), (5, "s_and_b32 s13, s61, 0xffff"), (6, f"s_mov_b32 s14, {OUT_BYTES}"), (6, "s_mov_b32 s15, 0x00020000"),
                 (7, f"s_mov_b32 s{sT}, 32768")]
        if t == XL:
            f += [(2*i, f"s_lshr_b32 s{46+i}, s{sTOK}, {8*i}") for i in range(4)]
            f += [(2*i+8, f"s_mov_b32 s{50+i}, {0x07060500 | i}") for i in range(4)]
            f += [(15, "s_mov_b32 s54, 0xffffff00")]
        if t == XL+1:
            stamp(A, opt, 11)
            if opt.get('rt'): stamp(A, opt, 3, True)
            for i in range(8):
                g = 2*i if i < 6 else 12 + (i-6)
                g = i + 3
                f += [(g, f"v_perm_b32 v{4*i+k}, v{4*i+k}, v{VF}, s{50+k}") for k in range(4)]
                f += [(g+1, f"buffer_store_dwordx4 v[{4*i}:{4*i+3}], v{VX}, s[28:31], s{42 if i < 4 else 43} offen offset:{(i&3)*1024} sc1")]
        if opt['xpoll'] and t == len(ph)-1:
            g = opt['xpoll']
            f += [(g, "s_mov_b32 exec_lo, 0"), (g, "s_brev_b32 exec_hi, 1"),
                  (g, f"buffer_load_dwordx4 v[224:227], v{VX}, s[28:31], s45 offen offset:3072 sc1"), (g, "s_mov_b64 exec, -1")]
        if t == opt['xld']:
            f += [(2*i, ld(i)) for i in range(8)]
        emit_phase(A, mft(st, items), f)
    if opt['xpoll']:
        assert opt['xld'] >= len(ph)
        A("s_mov_b32 exec_lo, 0")
        A("s_brev_b32 exec_hi, 1")
        A("s_branch L2_k0")
    elif opt['xld'] >= len(ph):
        for i in range(8): A(ld(i))
    for g in range(4):
        r = RCV + 8*g
        A(f"s_waitcnt vmcnt({6-2*g})")
        A.label(f"L2_c{g}")
        A(f"v_xor_b32 v{U0}, s46, v{r}")
        A(f"v_xor_b32 v{U1}, s46, v{r+4}")
        for k in range(1, 4):
            A(f"v_bitop3_b32 v{U0}, v{r+k}, s{46+k}, v{U0} bitop3:0xbe")
            A(f"v_bitop3_b32 v{U1}, v{r+4+k}, s{46+k}, v{U1} bitop3:0xbe")
        A(f"v_or_b32 v{U0}, v{U0}, v{U1}")
        A(f"v_and_b32 v{U0}, 0xff, v{U0}")
        A(f"v_cmp_ne_u32 vcc, 0, v{U0}")
        for k in range(8): A(f"v_and_b32 v{r+k}, s54, v{r+k}")
        A(f"s_cbranch_vccnz L2_r{g}")
        A.label(f"L2_o{g}")
        for i in range(4):
            A(f"v_pk_add_f32 v[{SUM+8*g+2*i}:{SUM+8*g+2*i+1}], v[{keep+8*g+2*i}:{keep+8*g+2*i+1}], v[{r+2*i}:{r+2*i+1}]")
        for mb in range(2):
            t = SUM + 8*g + 4*mb; d = CV + 4*((g >> 1)*2+mb) + 2*(g & 1)
            A(f"v_cvt_pk_bf16_f32 v{d}, v{t}, v{t+1}")
            A(f"v_cvt_pk_bf16_f32 v{d+1}, v{t+2}, v{t+3}")
        if g == 2:
            for mb in range(2):
                d = CV + 4*mb
                A(f"v_permlane16_swap_b32 v{d}, v{d+2}")
                A(f"v_permlane16_swap_b32 v{d+1}, v{d+3}")
    stamp(A, opt, 12)
    if opt.get('rt'): stamp(A, opt, 13, True)
    osc = opt['out_pol']
    for mb in range(2):
        d = CV + 4*mb
        A(f"buffer_store_dwordx4 v[{d}:{d+3}], v{VO}, s[12:15], {('s%d' % sT) if mb else 0} offen{osc}")
    for mb in range(2):
        d = CV + 8 + 4*mb
        A(f"v_permlane16_swap_b32 v{d}, v{d+2}")
        A(f"v_permlane16_swap_b32 v{d+1}, v{d+3}")
        A(f"buffer_store_dwordx4 v[{d}:{d+3}], v{VO}, s[12:15], {('s%d' % sT) if mb else 0} offen offset:64{osc}")
    A("s_branch L2_fin")
    for p in stubs:
        A.label(f"L2_w{p}")
        A(poll)
        A("s_waitcnt vmcnt(0)")
        ready_mask()
        A(f"s_andn2_b32 s7, s8, s{sRDY}")
        A(f"s_cbranch_scc0 L2_b{p}")
        A("s_cmp_eq_u32 s9, 0")
        A(f"s_cbranch_scc1 L2_b{p}")
        A("s_sub_u32 s9, s9, 1")
        A("s_sleep 2")
        A(f"s_branch L2_w{p}")
    TP = 224
    for g in range(4):
        A.label(f"L2_r{g}")
        A("s_mov_b32 exec_lo, 0")
        A("s_brev_b32 exec_hi, 1")
        A.label(f"L2_p{g}")
        A("s_cmp_eq_u32 s9, 0")
        A(f"s_cbranch_scc1 L2_q{g}")
        A("s_sub_u32 s9, s9, 1")
        A(f"s_sleep {opt['xsleep']}")
        A(f"buffer_load_dwordx4 v[{TP}:{TP+3}], v{VX}, s[28:31], s45 offen offset:3072 sc1")
        A.label(f"L2_k{g}")
        A("s_waitcnt vmcnt(0)")
        A(f"v_xor_b32 v{U0}, s46, v{TP}")
        for k in range(1, 4): A(f"v_bitop3_b32 v{U0}, v{TP+k}, s{46+k}, v{U0} bitop3:0xbe")
        A(f"v_and_b32 v{U0}, 0xff, v{U0}")
        A(f"v_cmp_ne_u32 vcc, 0, v{U0}")
        A("s_nop 4")
        A(f"s_cbranch_vccnz L2_p{g}")
        A("s_mov_b64 exec, -1")
        for i in range(2*g, 8): A(ld(i))
        A(f"s_waitcnt vmcnt({6-2*g})")
        A(f"s_branch L2_c{g}")
        A.label(f"L2_q{g}")
        A("s_mov_b64 exec, -1")
        A(f"s_branch L2_o{g}")
    A.label("L2_fin")
    if not opt.get('rt'): stamp(A, opt, 13)
    if opt.get('pp'):
        A("s_mov_b32 m0, s98"); A("s_nop 3"); A(f"v_writelane_b32 v{T0}, s96, m0")
        A("s_add_u32 s60, s16, 0x8200000")
        A("s_addc_u32 s61, s17, 0")
        A("s_and_b32 s61, s61, 0xffff")
        A("s_mov_b32 s62, 0x1000000")
        A("s_mov_b32 s63, 0x00020000")
        A(f"s_lshl_b32 s58, s{sGW}, 8")
        A(f"buffer_store_dword v{T0}, v{T1}, s[60:63], s58 offen")
    if opt.get('hdbg'):
        A("s_load_dwordx2 s[52:53], s[0:1], 40")
        A("s_waitcnt vmcnt(0) lgkmcnt(0)")
        stamp(A, opt, 15, True)
        A("s_waitcnt lgkmcnt(0)")
        A("s_and_b32 s53, s53, 0xffff")
        A("s_mov_b32 s54, 64")
        A("s_mov_b32 s55, 0x00020000")
        A(f"v_mov_b32 v{U0}, 0")
        for k, sl in enumerate([1, 8, 9, 2, 3, 13, 15]):
            A(f"s_sub_u32 s58, s{64+2*sl}, s{sTOK}")
            A("s_add_u32 s58, s58, 1000")
            A(f"v_writelane_b32 v{U0}, s58, {k+1}")
            A("s_sub_u32 s58, 100000, s58")
            A(f"v_writelane_b32 v{U0}, s58, {k+9}")
        A("s_mov_b64 exec, 0xfefe")
        A(f"buffer_atomic_umax v{U0}, v{T1}, s[52:55], 0 offen sc1")
    else:
        stamp_dump(A, opt, 0, sWAVE, U0)
    A.label("L_end")
    A("s_endpgm")
    if opt['cpf']:
        A.raw(f".org {name} + {opt['org']}, 0")
    return name, 256+NA+12, 256, LDS1

HEADER = """; Kernarg layout for this problem (56 bytes, ptrs only, base s[0:1]):
"""

def main():
    opt = dict(rd_gaps=[g for g in range(0, 44) if g % 4 != 3][:32],
               q0_dma=[3, 11, 19, 27, 35, 43],
               q1_dma=[3, 7, 19, 23, 27, 31, 35, 39, 43, 46, 49, 51, 53],
               q1f_dma=[1, 3, 5, 7, 10, 13, 16, 19, 23, 27, 31, 35, 39, 43, 45, 47, 49, 51, 53],
               q1j_dma=[0, 2, 4, 6, 9, 11, 13, 15, 18, 20, 22, 24, 28, 30, 32, 34, 37, 40, 43, 46, 49, 51, 53],
               pf_dist=5, jit=0, h_pre=4, fw=1, fx=1, f2=1, ep=None, pol_w=' nt', pol_x='', pol_pw='', epi_n=2, epi_plain=5, sentg=[19, 23, 27, 31, 35, 39, 43, 47], w2a=[19, 23, 27, 31, 35, 39, 43, 47], w2b=[3, 7, 11, 15, 19, 23, 27, 31], xl=6, xld=99, xpf=None, wsoff=0, cpf=3, cpf_n=3, org=36864, w_pre=6, g0=1, late_ds=2, wage=8, fwarm=1, lgw=1, xwarm=0, xpoll=1, xdelay=0, xsleep=1, out_pol='', lg2=14, g2_dma=[2, 6, 10, 14], g2_h=[2, 6, 10, 14])
    for a in sys.argv[2:]:
        k, v = a.split("=", 1)
        opt[k] = eval(v)
    A = Asm()
    name, nv, ao, lds = kernel(A, opt)
    out = HEADER
    out += f"; @launch grid=(256,1,1) block=(256,1,1) lds={lds}\n"
    out += '.amdgcn_target "amdgcn-amd-amdhsa--gfx950"\n'
    out += A.text()
    out += '.section .rodata,"a"\n'
    out += f""".p2align 6
.amdhsa_kernel {name}
  .amdhsa_next_free_vgpr {nv}
  .amdhsa_next_free_sgpr {100 if opt.get('stamps') else 64}
  .amdhsa_accum_offset {ao}
  .amdhsa_group_segment_fixed_size 0
  .amdhsa_kernarg_size 56
  .amdhsa_user_sgpr_count 2
  .amdhsa_user_sgpr_kernarg_segment_ptr 1
  .amdhsa_system_sgpr_workgroup_id_x 1
.end_amdhsa_kernel
"""
    open(sys.argv[1], "w").write(out)

main()
```

```python
import sys

class Asm:
    def __init__(self):
        self.lines = []
    def __call__(self, s):
        self.lines.append("    " + s)
    def label(self, s):
        self.lines.append(s + ":")
    def raw(self, s):
        self.lines.append(s)
    def text(self):
        return "\n".join(self.lines) + "\n"

DROP = set()
def emit_phase(A, mfmas, fillers):
    if 'rdw' in DROP: fillers = [(g, i) for g, i in fillers if not i.startswith("ds_read_b64_tr")]
    if 'rdx' in DROP: fillers = [(g, i) for g, i in fillers if not i.startswith("ds_read_b128")]
    if 'dma' in DROP: fillers = [(g, i) for g, i in fillers if not i.startswith("buffer_load")]
    g = {}
    for gap, ins in fillers:
        g.setdefault(gap, []).append(ins)
    if mfmas is None:
        for k in sorted(g):
            for ins in g[k]: A(ins)
        return
    for ins in g.get(-1, []): A(ins)
    for i, m in enumerate(mfmas):
        A(m)
        for ins in g.get(i, []): A(ins)
    assert max(g) < len(mfmas)

def place(items, gaps):
    assert len(items) <= len(gaps), (len(items), len(gaps))
    return list(zip(gaps, items))

def stamp(A, opt, i, real=False):
    if opt.get('stamps'):
        A(f"s_mem{'real' if real else ''}time s[{64+2*i}:{65+2*i}]")

def stamp_dump(A, opt, kidx, sWAVE, vt):
    if not opt.get('stamps'): return
    A("s_waitcnt vmcnt(0) lgkmcnt(0)")
    stamp(A, opt, 14)
    stamp(A, opt, 15, True)
    A("s_waitcnt lgkmcnt(0)")
    A("s_add_u32 s60, s16, 0x8000000")
    A("s_addc_u32 s61, s17, 0")
    A("s_and_b32 s61, s61, 0xffff")
    A("s_mov_b32 s62, 0x1000000")
    A("s_mov_b32 s63, 0x00020000")
    A("s_lshl_b32 s58, s2, 2")
    A(f"s_add_u32 s58, s58, s{sWAVE}")
    A(f"s_add_u32 s58, s58, {kidx*1024}")
    A("s_lshl_b32 s58, s58, 7")
    A("s_mov_b64 exec, 1")
    A(f"v_mov_b32 v{vt+1}, 0")
    for i in range(32):
        A(f"v_mov_b32 v{vt}, s{64+i}")
        A(f"buffer_store_dword v{vt}, v{vt+1}, s[60:63], s58 offen offset:{4*i}")
        A("s_nop 1")

X_BYTES = 2048*1024*2
W_BYTES = 1024*3584*2
OUT_BYTES = 2048*1024*2
H_MB_STRIDE = 224*1024
H_BYTES = 64*H_MB_STRIDE
FLAG_OFF = 32 << 20
XCH_OFF = 48 << 20
WBASE = 65536
WSLOT = 32768
LDS1 = 163840
MF = "v_mfma_f32_16x16x32_bf16"


HFLAG_OFF = 32 << 20
XFLAG_OFF = (32 << 20) + 65536
WS_RANGE = XCH_OFF + (8 << 20)

def kernel(A, opt):
    name = "standalone__glu_gated_swiglu__prompt_kernel"
    VOW, VOX, VWR, VXR = 224, 232, 240, 247
    VPX, VP2, VLANE = 249, 250, 251
    T0, T1, T2, T3 = 252, 253, 254, 255
    VPW = T3
    VTOK = T2
    WSET = [0, 56]; XSET = [112, 128]; NA = 144
    sWAVE, sKX, sKW, sMX, sMW, sDR, sCNT, sT, sXW, sWW = 32, 33, 34, 35, 36, 37, 38, 39, 40, 41
    sIW, sPF2, sC0, sSL, sRS = 42, 43, 44, 46, 47
    sIDX, sMT, sNT, sBLK = 48, 49, 50, 51
    sGW, sPX, sPW, sIX = 56, 57, 58, 59
    sC1 = 18
    sXB, sXS = 62, 63
    A.raw(".text"); A.raw(f".globl {name}"); A.raw(".p2align 8"); A.raw(f".type {name},@function")
    A.label(name)
    A("s_cmp_ge_u32 s2, 256")
    A("s_cbranch_scc1 L_end")
    stamp(A, opt, 0); stamp(A, opt, 1, True)
    A("s_load_dwordx8 s[4:11], s[0:1], 0")
    A("s_load_dwordx4 s[60:63], s[0:1], 32")
    A("s_load_dwordx2 s[16:17], s[0:1], 48")
    A(f"v_lshrrev_b32 v{T0}, 6, v0")
    A(f"v_and_b32 v{VLANE}, 63, v0")
    A("s_and_b32 s3, s2, 7")
    A(f"v_readfirstlane_b32 s{sWAVE}, v{T0}")
    A(f"s_lshr_b32 s{sIDX}, s2, 3")
    if opt['cpf0']:
        A("s_getpc_b64 s[12:13]")
        A.label("L_pc0")
        A(f"s_lshl_b32 s14, s{sIDX}, 2")
        A(f"s_add_u32 s14, s14, s{sWAVE}")
        A("s_lshl_b32 s14, s14, 6")
        A("s_load_dword s15, s[12:13], s14")
    A(f"s_and_b32 s{sMT}, s{sIDX}, 7")
    A(f"s_lshl_b32 s{sNT}, s3, 2")
    A(f"s_lshr_b32 s{sBLK}, s{sIDX}, 3")
    A(f"s_add_u32 s{sNT}, s{sNT}, s{sBLK}")
    A(f"v_lshrrev_b32 v{T0}, 4, v{VLANE}")
    A(f"v_bfe_u32 v{T1}, v{VLANE}, 1, 3")
    A(f"v_xor_b32 v{T1}, v{T1}, v{T0}")
    A(f"v_and_b32 v{T2}, 1, v{VLANE}")
    A(f"v_lshlrev_b32 v{T2}, 4, v{T2}")
    A("s_movk_i32 s55, 7168")
    A(f"v_mad_u32_u24 v{T2}, v{T0}, s55, v{T2}")
    A(f"s_and_b32 s52, s{sWAVE}, 1")
    A("s_mul_i32 s53, s52, 229376")
    A(f"s_mul_i32 s54, s{sNT}, 224")
    A("s_add_u32 s53, s53, s54")
    A(f"v_add_u32 v{T2}, s53, v{T2}")
    A("v_mov_b32 v0, 0x40000000")
    for pat in range(2):
        d = 1+pat
        if pat: A(f"v_xor_b32 v{T1}, 4, v{T1}")
        A(f"v_lshl_add_u32 v{d}, v{T1}, 5, v{T2}")
        A(f"v_cmp_eq_u32 vcc, 7, v{T1}")
        A("s_nop 1")
        A(f"v_cndmask_b32 v{d}, v{d}, v0, vcc")
    for i in range(8):
        A(f"v_add_u32 v{VOW+i}, {i*4*7168 - (i & 3)*1024}, v{1+((i>>1)&1)}")
    A(f"v_lshrrev_b32 v{T0}, 3, v{VLANE}")
    A(f"v_and_b32 v{T1}, 7, v{VLANE}")
    A(f"v_lshrrev_b32 v{T2}, 1, v{T0}")
    A(f"v_xor_b32 v{T1}, v{T1}, v{T2}")
    A(f"v_lshlrev_b32 v{T1}, 4, v{T1}")
    A(f"v_lshl_add_u32 v{T1}, v{T0}, 11, v{T1}")
    A(f"s_lshl_b32 s{sBLK}, s{sMT}, 2")
    A(f"s_add_u32 s{sBLK}, s{sBLK}, s{sWAVE}")
    A(f"s_lshl_b32 s53, s{sBLK}, 17")
    A(f"v_add_u32 v{T1}, s53, v{T1}")
    A(f"v_xor_b32 v{T2}, 64, v{T1}")
    for i in range(8):
        A(f"v_add_u32 v{VOX+i}, {i*16384 - (i & 3)*1024}, v{T2 if i & 1 else T1}")
    A(f"s_lshl_b32 s{sXW}, s{sWAVE}, 13")
    A(f"s_add_u32 s{sWW}, s{sXW}, {WBASE}")
    EP = opt['ep']
    if EP:
        A(f"s_lshl_b32 s57, s{sIDX}, 1")
        A("s_add_u32 s57, s57, s52")
        A("s_mul_i32 s57, s57, 7168")
        A("s_mul_i32 s58, s3, 896")
        A("s_add_u32 s57, s57, s58")
        A(f"s_add_u32 s57, s57, {EP[2]*458752}")
        if EP[0] == 16:
            A(f"v_lshlrev_b32 v4, 4, v{VLANE}")
            A("v_add_u32 v4, s57, v4")
            A(f"v_cmp_gt_u32 vcc, 48, v{VLANE}")
            A("s_nop 1")
            A("v_cndmask_b32 v5, v0, v4, vcc")
        else:
            n = 896 // EP[0]; sh = 6; assert EP[0] == 64
            A(f"v_mov_b32 v4, v{VLANE}")
            A("v_mov_b32 v5, 0")
            for r in range(56 // n - 1):
                A(f"v_cmp_le_u32 vcc, {n}, v4")
                A(f"v_subrev_u32 v6, {n}, v4")
                A(f"v_add_u32 v7, 458752, v5")
                A("v_cndmask_b32 v4, v4, v6, vcc")
                A("v_cndmask_b32 v5, v5, v7, vcc")
            A(f"v_lshl_add_u32 v4, v4, {sh}, v5")
            A("v_add_u32 v4, s57, v4")
            A(f"v_cmp_gt_u32 vcc, {14*min(4, EP[3])}, v{VLANE}")
            A("s_nop 1")
            A("v_cndmask_b32 v4, v0, v4, vcc")
    def early_pf():
        n = 0
        if EP[0] == 16:
            for st in range(EP[3]):
                A(f"s_mov_b32 s57, {st*458752}")
                A(f"buffer_load_dwordx4 a[{NA+8}:{NA+11}], v4, s[24:27], s57 offen")
                A(f"buffer_load_dwordx4 a[{NA+8}:{NA+11}], v5, s[24:27], s57 offen offset:1024")
                n += 2
        else:
            per = 56 // (896 // EP[0])
            for st in range(0, EP[3], per):
                A(f"s_mov_b32 s57, {st*458752}")
                A(f"buffer_load_dword a{NA+8}, v4, s[24:27], s57 offen{opt['pol_pw']}")
                n += 1
        return n
    A("s_waitcnt lgkmcnt(0)")
    if opt['wsoff']:
        A(f"s_add_u32 s16, s16, {opt['wsoff'] << 20}")
        A("s_addc_u32 s17, s17, 0")
    A(f"s_cmp_ge_u32 s{sWAVE}, 2")
    A("s_cselect_b32 s24, s8, s6")
    A("s_cselect_b32 s25, s9, s7")
    A("s_and_b32 s25, s25, 0xffff")
    A(f"s_mov_b32 s26, {W_BYTES}")
    A("s_mov_b32 s27, 0x00020000")
    A("s_mov_b32 s20, s4")
    A("s_and_b32 s21, s5, 0xffff")
    A(f"s_mov_b32 s22, {X_BYTES}")
    A("s_mov_b32 s23, 0x00020000")
    def dma_w(i): return f"buffer_load_dwordx4 v{VOW+i}, s[24:27], s{sKW} offen offset:{(i&3)*1024}{opt['pol_w']} lds"
    def dma_x(i): return f"buffer_load_dwordx4 v{VOX+i}, s[20:23], s{sKX} offen offset:{(i&3)*1024}{opt['pol_x']} lds"
    def issue_stage(st, which="wx"):
        if "w" in which:
            A(f"s_mov_b32 s{sKW}, {st*64*7168*opt['fw']}")
            for h in range(2):
                A(f"s_add_u32 m0, s{sWW}, {st*WSLOT+h*4096}")
                A("s_nop 0")
                for i in range(4*h, 4*h+4): A(dma_w(i))
        if "x" in which:
            A(f"s_mov_b32 s{sKX}, {st*128*opt['fx']}")
            for h in range(2):
                A(f"s_add_u32 m0, s{sXW}, {st*32768+h*4096}")
                A("s_nop 0")
                for i in range(4*h, 4*h+4): A(dma_x(i))
    NE = 0
    if EP and EP[1] == 0: early_pf()
    issue_stage(0)
    if EP and EP[1] == 1: NE = early_pf()
    if not opt.get('rt'): stamp(A, opt, 2)
    A(f"v_and_b32 v{T0}, 15, v{VLANE}")
    A(f"v_lshrrev_b32 v{T1}, 4, v{VLANE}")
    A(f"v_bfe_u32 v{T2}, v{VLANE}, 1, 3")
    A(f"v_xor_b32 v{T2}, v{T2}, v{T1}")
    A(f"v_lshlrev_b32 v{T2}, 4, v{T2}")
    A(f"v_lshl_add_u32 v{T2}, v{T0}, 7, v{T2}")
    A(f"v_add_u32 v{VXR}, s{sXW}, v{T2}")
    A(f"v_xor_b32 v{VXR+1}, 64, v{VXR}")
    A(f"v_bfe_u32 v{T0}, v{VLANE}, 2, 3")
    A(f"v_bfe_u32 v{T2}, v{VLANE}, 2, 2")
    A(f"v_lshl_add_u32 v{T2}, v{T1}, 3, v{T2}")
    A(f"v_lshlrev_b32 v{T2}, 8, v{T2}")
    A(f"v_and_b32 v{T3}, 3, v{VLANE}")
    A(f"v_lshl_add_u32 v{T2}, v{T3}, 3, v{T2}")
    A(f"v_add_u32 v{T2}, {WBASE}, v{T2}")
    for fb in range(7):
        A(f"v_xor_b32 v{T3}, {fb}, v{T0}")
        A(f"v_lshl_add_u32 v{VWR+fb}, v{T3}, 5, v{T2}")
    A("s_mov_b32 s12, s10")
    A("s_and_b32 s13, s11, 0xffff")
    A(f"s_mov_b32 s14, {W_BYTES}")
    A("s_mov_b32 s15, 0x00020000")
    A(f"s_lshl_b32 s{sGW}, s2, 2")
    A(f"s_add_u32 s{sGW}, s{sGW}, s{sWAVE}")
    A(f"s_lshl_b32 s57, s{sIDX}, 2")
    A(f"s_add_u32 s57, s57, s{sWAVE}")
    A("s_lshl_b32 s57, s57, 15")
    A(f"v_lshrrev_b32 v{T0}, 1, v{VLANE}")
    A(f"v_lshlrev_b32 v{T0}, 11, v{T0}")
    A(f"v_and_b32 v{T1}, 1, v{VLANE}")
    A(f"v_lshl_add_u32 v{T0}, v{T1}, 6, v{T0}")
    A(f"v_add_u32 v{T0}, s57, v{T0}")
    A(f"v_cmp_gt_u32 vcc, 32, v{VLANE}")
    A(f"s_lshl_b32 s57, s{sIDX}, 1")
    A("s_add_u32 s57, s57, s52")
    A(f"v_cndmask_b32 v{VPX}, v0, v{T0}, vcc")
    A("s_mul_i32 s57, s57, 7168")
    A("s_mul_i32 s58, s3, 896")
    A("s_add_u32 s57, s57, s58")
    A(f"v_lshlrev_b32 v{T1}, 6, v{VLANE}")
    A(f"v_add_u32 v{T0}, s57, v{T1}")
    A(f"v_cmp_gt_u32 vcc, 14, v{VLANE}")
    P2S = opt['pf2_skip']; P2L = -(-112 // (14 - P2S))
    A(f"s_mul_i32 s57, s{sGW}, {64*P2L}")
    A(f"s_mov_b32 s{sPF2}, {(-P2S*65536*P2L) & 0xffffffff}")
    A(f"v_cndmask_b32 v{VPW}, v0, v{T0}, vcc")
    A(f"v_add_u32 v{T0}, s57, v{T1}")
    A(f"v_cmp_gt_u32 vcc, {P2L}, v{VLANE}")
    A("s_mov_b32 s28, s16")
    A("s_and_b32 s29, s17, 0xffff")
    A(f"v_cndmask_b32 v{VP2}, v0, v{T0}, vcc")
    A(f"s_mov_b32 s30, {WS_RANGE}")
    A("s_mov_b32 s31, 0x00020000")
    A(f"s_mov_b32 s{sC0}, 0xbfb8aa3b")
    A(f"s_mov_b32 s{sC0+1}, 0xbfb8aa3b")
    A(f"s_mov_b32 s{sC1}, 1.0")
    A(f"s_mov_b32 s{sC1+1}, 1.0")
    A("s_mov_b32 s52, s62")
    A("s_and_b32 s53, s63, 0xffff")
    A("s_mov_b32 s54, 4")
    A("s_mov_b32 s55, 0x00020000")
    for i in range(4): A(f"v_accvgpr_write_b32 a{NA-4+i}, 0")
    A(f"v_lshlrev_b32 v{T1}, 2, v{VLANE}")
    A(f"v_lshlrev_b32 v{T2}, 4, v{VLANE}")
    A(f"s_lshl_b32 s{sXB}, s{sGW}, 13")
    A(f"s_add_u32 s{sXB}, s{sXB}, {XCH_OFF}")
    PFD = opt['pf_dist']
    def pf_x(so): return f"buffer_load_dword a{NA}, v{VPX}, s[20:23], {so} offen"
    def pf_w(so): return f"buffer_load_dword a{NA}, v{VPW}, s[24:27], {so} offen{opt['pol_pw']}"
    def pf_2(): return f"buffer_load_dword a{NA}, v{VP2}, s[12:15], s{sPF2} offen"
    for t in range(14):
        A(f"v_mfma_f32_32x32x16_bf16 v[{16*t}:{16*t+15}], a[{NA-4}:{NA-1}], a[{NA-4}:{NA-1}], 0")
    def acc(fb, gu, mb): return 4*((fb*2+gu)*4+mb)
    def mfmas(st):
        out = []
        for fb in range(7):
            for gu in range(2):
                for mb in range(4):
                    c = acc(fb, gu, mb); w = WSET[st]+4*(fb*2+gu); x = XSET[st]+4*mb
                    out.append(f"{MF} v[{c}:{c+3}], a[{w}:{w+3}], a[{x}:{x+3}], v[{c}:{c+3}]")
        return out
    def wreads(st, ks):
        out = []
        for fb in range(7):
            for gu in range(2):
                w = WSET[st]+4*(fb*2+gu); off = ks*8192 + gu*16384
                out.append(f"ds_read_b64_tr_b16 a[{w}:{w+1}], v{VWR+fb} offset:{off}")
                out.append(f"ds_read_b64_tr_b16 a[{w+2}:{w+3}], v{VWR+fb} offset:{off+1024}")
        return out
    def xreads(st, ks):
        return [f"ds_read_b128 a[{XSET[st]+4*mb}:{XSET[st]+4*mb+3}], v{VXR+ks} offset:{mb*2048}" for mb in range(4)]
    NPF = 3
    NV = 16 + 2*NPF
    JIT = opt['jit']
    issue_stage(1, "w" if JIT else "wx")
    if EP and EP[1] == 2: NE = early_pf()
    def code_pf(tag, lo, n):
        A("s_getpc_b64 s[6:7]")
        A.label(f"L_pc{tag}")
        A(f"s_lshl_b32 s8, s{sIDX}, 2")
        A(f"s_add_u32 s8, s8, s{sWAVE}")
        A("s_lshl_b32 s8, s8, 6")
        A(f"s_add_u32 s8, s8, {lo} - L_pc{tag}")
        A("s_add_u32 s6, s6, s8")
        A("s_addc_u32 s7, s7, 0")
        for k in range(n): A(f"s_load_dword s8, s[6:7], {8192*k}")
    if opt['cpf'] & 1: code_pf("a", "L1_loop", opt['cpf_n'])
    A(f"s_cmp_lg_u32 s{sGW}, 0")
    A("s_cbranch_scc1 L_notok")
    A("s_memrealtime s[4:5]")
    A("s_waitcnt lgkmcnt(0)")
    A("s_or_b32 s4, s4, 1")
    A(f"v_mov_b32 v{T0}, s4")
    A(f"buffer_store_dword v{T0}, v{T1}, s[52:55], 0 offen sc1")
    A.label("L_notok")
    A(f"s_mov_b32 s{sKW}, {2*64*7168*opt['fw']}")
    A(f"s_mov_b32 s{sKX}, {(128 if JIT else 256)*opt['fx']}")
    A(f"s_mov_b32 s{sIW}, {64*7168*opt['fw']}")
    A(f"s_mov_b32 s{sIX}, {128*opt['fx']}")
    A(f"s_mov_b32 s{sPX}, {PFD*128 if opt['fx'] else 0x40000000}")
    A(f"s_mov_b32 s{sPW}, {PFD*64*7168 if opt['fw'] else 0x40000000}")
    if not opt['f2']: A(f"s_mov_b32 s{sPF2}, 0x40000000")
    A(f"s_mov_b32 s{sMX}, s{sXW}")
    A(f"s_add_u32 s{sMW}, s{sWW}, {2*WSLOT}")
    A(f"s_mov_b32 s{sRS}, 0")
    A(f"s_mov_b32 s{sSL}, {WSLOT}")
    A(f"s_mov_b32 s{sCNT}, 0")
    if not opt.get('rt'): stamp(A, opt, 3)
    A(f"s_waitcnt vmcnt({(8 if JIT else 16) + NE})")
    A("s_barrier")
    stamp(A, opt, 4); stamp(A, opt, 8, True)
    for r in xreads(0, 0) + wreads(0, 0): A(r)
    rg = opt['rd_gaps']
    def q1(first):
        pre = []
        if first and JIT:
            A(f"s_add_u32 m0, s{sXW}, 32768")
            A("s_nop 0")
            for i in range(4): A(dma_x(i))
            A(f"s_add_u32 m0, s{sXW}, {32768+4096}")
        A("s_waitcnt lgkmcnt(0)")
        f = place(xreads(1, 1) + wreads(1, 1), rg)
        if first:
            dg = list(opt['q1f_dma']); nw = 8
            if JIT:
                dg = list(opt['q1j_dma'])
                f += place([dma_x(i) for i in range(4, 8)], dg[:4]); f += [(dg[3], f"s_mov_b32 s{sKX}, 256")]
                dg = dg[4:]
            f += [(dg[0]-1, f"s_mov_b32 m0, s{sMW}"), (dg[4]-1, f"s_add_u32 m0, s{sMW}, 4096")]
        else:
            dg = opt['q1_dma']; nw = 2
        f += place([dma_w(i) for i in range(8-nw, 8)], dg[0:nw])
        xg = dg[nw:nw+8]; pg = dg[nw+8:]
        f += [(xg[0]-2, "s_waitcnt lgkmcnt(8)"), (xg[0]-1, f"s_mov_b32 m0, s{sMX}"), (xg[4]-1, f"s_add_u32 m0, s{sMX}, 4096")]
        assert sum(1 for g in rg if g <= xg[0]-2) >= 12 and xg[0]-1 > dg[nw-1] and xg[4]-1 > xg[3]
        f += place([dma_x(i) for i in range(8)], xg)
        f += place([pf_w(f"s{sPW}"), pf_x(f"s{sPX}"), pf_2()], pg)
        b = max(rg)+1
        w = dg[nw-1]
        f += [(w+1, f"s_add_u32 s{sKW}, s{sKW}, s{sIW}"),
              (w+1, f"s_lshl_b32 s{sT}, s{sRS}, 15"), (w+2, f"s_add_u32 s{sMW}, s{sWW}, s{sT}"),
              (w+2, f"s_add_u32 s{sRS}, s{sRS}, 1"), (w+3, f"s_cmp_eq_u32 s{sRS}, 3"),
              (w+3, f"s_cselect_b32 s{sDR}, {(-2*WSLOT) & 0xffffffff}, s{sSL}"), (w+3, f"s_cselect_b32 s{sRS}, 0, s{sRS}")]
        assert w+3 < b
        for k in range(7):
            f.append((b+k, f"v_add_u32 v{VWR+k}, s{sDR}, v{VWR+k}"))
        f += [(b+7, f"v_xor_b32 v{VXR}, 0x8000, v{VXR}"), (b+8, f"v_xor_b32 v{VXR+1}, 0x8000, v{VXR+1}")]
        e = xg[7]+1
        f += [(e, f"s_xor_b32 s{sMX}, s{sMX}, 0x8000"), (e, f"s_add_u32 s{sKX}, s{sKX}, s{sIX}")]
        e = max(dg)+1
        assert e+1 <= 55 and b+8 <= 55
        f += [(e, f"s_add_u32 s{sPW}, s{sPW}, {64*7168}"), (e, f"s_add_u32 s{sPF2}, s{sPF2}, {65536*P2L}"), (e, f"s_add_u32 s{sPX}, s{sPX}, 128"),
              (e+1, f"s_cmp_ge_u32 s{sPX}, 2048"), (e+1, f"s_cselect_b32 s{sPX}, 0x40000000, s{sPX}"),
              (55, f"s_add_u32 s{sCNT}, s{sCNT}, 1"), (55, f"s_cmp_lt_u32 s{sCNT}, 14")]
        emit_phase(A, mfmas(0), f)
    q1(True)
    A(f"s_waitcnt vmcnt({16+NPF + (NE if (EP and EP[1] == 2 and not JIT) else 0)}) lgkmcnt(0)")
    A("s_branch L1_bar")
    A.raw(".p2align 6")
    A.label("L1_loop")
    A(f"s_waitcnt vmcnt({NV}) lgkmcnt(0)")
    A.label("L1_bar")
    A("s_barrier")
    if opt.get('pp'):
        A(f"s_mov_b32 m0, s{sCNT}"); A("s_nop 3"); A(f"v_writelane_b32 v{T0}, s96, m0")
        A("s_memtime s[96:97]")
    f = place(xreads(0, 0) + wreads(0, 0), rg)
    dg = opt['q0_dma']
    f += [(dg[0]-1, f"s_mov_b32 m0, s{sMW}"), (dg[4]-1, f"s_add_u32 m0, s{sMW}, 4096")]
    f += place([dma_w(i) for i in range(6)], dg)
    emit_phase(A, mfmas(1), f)
    q1(False)
    A("s_cbranch_scc1 L1_loop")
    sKH2, sMT2, sNT2 = 4, 5, 6
    def ppstamp(k):
        if opt.get('pp'):
            A(f"v_writelane_b32 v{T0}, s96, {k}")
            A("s_memtime s[96:97]")
    def dma2(i): return f"buffer_load_dwordx4 v{VOW+i}, s[20:23], s{sWW} offen offset:{(i&3)*1024} lds"
    def dma2_group(gaps, m0base, so):
        return [(gaps[0]-1, f"s_add_u32 m0, s{sXW}, {m0base}"), (gaps[0]-1, f"s_add_u32 s{sWW}, s{sGB}, {so}"),
                (gaps[4]-1, f"s_add_u32 m0, s{sXW}, {m0base+4096}")] + place([dma2(i) for i in range(8)], gaps)
    VH, Z3, Z0, Z1, Z2, VPO, VPR = VOX, VOX+1, VOX+2, VOX+3, VOX+4, VOX+5, VOX+6
    REG = [98304, 131072, 0, 32768]
    sG0, sGB = 57, 58
    sw = [f"s_lshr_b32 s{sKH2}, s3, 2", f"s_and_b32 s{sG0}, s3, 3", f"s_lshl_b32 s{sMT2}, s{sG0}, 2",
          f"s_and_b32 s{sNT2}, s{sIDX}, 3", f"s_add_u32 s{sMT2}, s{sMT2}, s{sNT2}", f"s_lshr_b32 s{sNT2}, s{sIDX}, 2",
          f"s_mul_i32 s7, s{sKH2}, {W_BYTES//2}", "s_add_u32 s20, s10, s7", "s_addc_u32 s21, s11, 0", "s_and_b32 s21, s21, 0xffff",
          f"s_mov_b32 s22, {W_BYTES//2}",
          f"s_lshl_b32 s7, s{sWAVE}, 16", f"s_lshl_b32 s8, s{sNT2}, 8", "s_add_u32 s7, s7, s8"]
    vw = [f"v_lshrrev_b32 v{Z0}, 4, v{VLANE}", f"v_bfe_u32 v{Z1}, v{VLANE}, 1, 3", f"v_xor_b32 v{Z1}, v{Z1}, v{Z0}",
          f"v_and_b32 v{Z2}, 1, v{VLANE}", f"v_lshlrev_b32 v{Z2}, 4, v{Z2}", f"v_lshl_add_u32 v{Z2}, v{Z0}, 11, v{Z2}",
          f"v_lshl_add_u32 v{Z2}, v{Z1}, 5, v{Z2}", f"v_add_u32 v{Z2}, s7, v{Z2}", f"v_xor_b32 v{Z0}, 128, v{Z2}"]
    vw += [f"v_add_u32 v{VOW+i}, {i*8192 - (i & 3)*1024}, v{Z0 if (i >> 1) & 1 else Z2}" for i in range(8)]
    A(f"s_waitcnt vmcnt({NV}) lgkmcnt(0)")
    A("s_barrier")
    ppstamp(14)
    f = place(xreads(0, 0) + wreads(0, 0), rg)
    f += [(i//2, x) for i, x in enumerate(sw)]
    f += [(i+1, x) for i, x in enumerate(vw)]
    f += [(7, f"s_lshl_b32 s8, s{sIDX}, 2"), (7, f"s_add_u32 s8, s8, s{sWAVE}"), (8, f"s_mul_i32 s{sGB}, s{sG0}, 917504"), (8, "s_lshl_b32 s8, s8, 13"), (9, f"s_add_u32 s8, s8, s{sGB}"), (9, f"s_sub_u32 s9, s8, {28*131072}"),
          (10, "s_cselect_b32 s8, s8, s9"), (10, "s_add_u32 s9, s8, 4096"),
          (0, f"v_lshlrev_b32 v{Z3}, 6, v{VLANE}"),
          (11, f"buffer_load_dword a{NA}, v{Z3}, s[20:23], s8 offen"), (15, f"buffer_load_dword a{NA}, v{Z3}, s[20:23], s9 offen")]
    NXW = 0
    if opt['xwarm']:
        NXW = opt['xwarm']
        f += [(19, f"v_lshlrev_b32 v{Z3}, 7, v{VLANE}")]
        f += [(23+4*i, f"buffer_load_dword a{NA}, v{Z3}, s[28:31], s{sXB} offen offset:{64*i}") for i in range(NXW)]
    emit_phase(A, mfmas(1), f)
    A("s_waitcnt lgkmcnt(0)")
    f = place(xreads(1, 1) + wreads(1, 1), rg)
    f += dma2_group(opt['w2a'], REG[0], 0)
    b = max(rg)+1
    f += [(b+k, f"v_add_u32 v{VWR+k}, {(-2*WSLOT) & 0xffffffff}, v{VWR+k}") for k in range(7)]
    f += [(b+7, f"v_xor_b32 v{VXR}, 0x8000, v{VXR}"), (b+8, f"v_xor_b32 v{VXR+1}, 0x8000, v{VXR+1}")]
    emit_phase(A, mfmas(0), f)
    A(f"s_waitcnt vmcnt({NPF+10+NXW}) lgkmcnt(0)")
    A("s_barrier")
    ppstamp(15)
    f = place(xreads(0, 0) + wreads(0, 0), rg)
    f += dma2_group(opt['w2b'], REG[1], 262144)
    f += [(13, f"s_lshl_b32 s8, s{sMT2}, 2"), (14, f"s_add_u32 s8, s8, s{sKH2}"), (15, "s_lshl_b32 s8, s8, 7"), (16, f"s_add_u32 s8, s8, {HFLAG_OFF}"),
          (13, f"v_and_b32 v{VPO}, 60, v{T1}"), (14, f"v_bfe_u32 v{Z0}, v{VLANE}, 4, 1"), (15, f"v_lshl_add_u32 v{VPO}, v{Z0}, 8, v{VPO}"),
          (17, f"v_add_u32 v{VPO}, s8, v{VPO}")]
    if opt['fwarm']: f += [(35, f"buffer_load_dword v{VPR}, v{VPO}, s[28:31], 0 offen sc1")]
    f += [(0, f"s_lshl_b32 s7, s{sBLK}, 1"), (1, f"s_mul_i32 s7, s7, {H_MB_STRIDE}"), (4, f"s_mul_i32 s8, s{sNT}, 7168"),
          (5, "s_add_u32 s7, s7, s8"), (8, f"v_add_u32 v{VH}, s7, v{T2}")]
    f += [(9, f"s_mov_b32 s42, s{sXB}"), (12, "s_add_u32 s43, s42, 4096")]
    f += [(54, f"buffer_load_dword v{VTOK}, v{T1}, s[52:55], 0 offen sc1")]
    emit_phase(A, mfmas(1), f)
    A.label("L1_done")
    stamp(A, opt, 5); stamp(A, opt, 9, True)
    A("s_waitcnt lgkmcnt(0)")
    def epi(fb, p):
        o = []
        g = acc(fb, 0, 2*p); u = acc(fb, 1, 2*p)
        for i in range(4): o.append(f"v_pk_mul_f32 v[{u+2*i}:{u+2*i+1}], v[{g+2*i}:{g+2*i+1}], v[{u+2*i}:{u+2*i+1}]")
        for i in range(4): o.append(f"v_pk_mul_f32 v[{g+2*i}:{g+2*i+1}], v[{g+2*i}:{g+2*i+1}], s[{sC0}:{sC0+1}]")
        for i in range(8): o.append(f"v_exp_f32 v{g+i}, v{g+i}")
        for i in range(4): o.append(f"v_pk_add_f32 v[{g+2*i}:{g+2*i+1}], v[{g+2*i}:{g+2*i+1}], s[{sC1}:{sC1+1}]")
        for i in range(8): o.append(f"v_rcp_f32 v{g+i}, v{g+i}")
        for i in range(4): o.append(f"v_pk_mul_f32 v[{u+2*i}:{u+2*i+1}], v[{g+2*i}:{g+2*i+1}], v[{u+2*i}:{u+2*i+1}]")
        for i in range(4): o.append(f"v_cvt_pk_bf16_f32 v{g+i}, v{u+2*i}, v{u+2*i+1}")
        o.append(f"s_mov_b32 s{sT}, {p*H_MB_STRIDE + (fb//4)*4096}")
        o.append("s_nop 0")
        o.append(f"v_permlane16_swap_b32 v{g}, v{g+2}")
        o.append(f"v_permlane16_swap_b32 v{g+1}, v{g+3}")
        o.append(f"buffer_store_dwordx4 v[{g}:{g+3}], v{VH}, s[28:31], s{sT} offen offset:{(fb%4)*1024} sc1")
        return o
    m0s, m1s = mfmas(0), mfmas(1)
    order = [('A', 0)]
    for k in range(6): order += [('A', k+1), ('B', k)]
    order += [('B', 6)]
    ml = []; done = {}
    f = [(i, r) for i, r in enumerate(xreads(1, 1) + wreads(1, 1))]
    for kind, fb in order:
        if kind == 'B':
            issued = min(32, len(ml)); need = 8 + 4*fb
            f.append((len(ml)-1, f"s_waitcnt lgkmcnt({min(15, issued-need)})"))
        ml += (m0s if kind == 'A' else m1s)[8*fb:8*fb+8]
        if kind == 'B': done[fb] = len(ml)
    stream = [(fb, ins) for fb in range(7) for p in range(2) for ins in epi(fb, p)]
    pos = 0
    if opt['epi_plain']:
        nfb = opt['epi_plain']
        pre = []
        for fb in range(nfb):
            for p in range(2):
                g = acc(fb, 0, 2*p); u = acc(fb, 1, 2*p)
                pre += [(fb, f"v_mul_f32 v{u+i}, v{g+i}, v{u+i}") for i in range(8)]
                pre += [(fb, f"v_mul_f32 v{g+i}, s{sC0}, v{g+i}") for i in range(8)]
        rest = [(7, ins) for fb in range(7) for p in range(2) for ins in (epi(fb, p)[8:] if fb < nfb else epi(fb, p))]
        stream = pre + rest; done[7] = 10**6
    for gap in range(done[0]+2, len(ml)):
        for _ in range(opt['epi_n']):
            if done[stream[pos][0]] + 2 <= gap:
                f.append((gap, stream[pos][1])); pos += 1
    emit_phase(A, ml, f)
    if opt['cpf'] & 2:
        A("s_getpc_b64 s[10:11]")
        A.label("L_pcb")
        A(f"s_lshl_b32 s8, s{sIDX}, 2")
        A(f"s_add_u32 s8, s8, s{sWAVE}")
        A("s_lshl_b32 s8, s8, 6")
        A("s_add_u32 s8, s8, L_hgo - L_pcb")
        A("s_add_u32 s10, s10, s8")
        A("s_addc_u32 s11, s11, 0")
        for k in range(2): A(f"s_load_dword s63, s[10:11], {8192*k}")
    assert stream[pos][0] <= 4 or stream[pos][0] == 7
    for fb, ins in stream[pos:]: A(ins)
    poll = f"buffer_load_dword v{VPR}, v{VPO}, s[28:31], 0 offen sc1"
    A(poll)
    stamp(A, opt, 6)
    R = 8
    ACC = 0; WS = [64, 96]; VWD = 128; VRD = 132
    VHL, VO, VX, VF = 148, 149, 150, 151
    U0, U1, U2, U3 = 152, 153, 154, 155
    VSO = 157
    sRDY, sNP = 46, 47
    sKW2, sKH, sM, sTOK, sMB = 33, 34, 35, 36, 37
    def slot_addr(k): return REG[k >> 1] + (k & 1)*16384
    A(f"s_lshl_b32 s7, s{sWAVE}, 15")
    for i in range(4): A(f"v_subrev_u32 v{VWD+i}, s7, v{VOW+i}")
    A(f"v_and_b32 v{U0}, 15, v{VLANE}")
    A(f"v_bfe_u32 v{U1}, v{VLANE}, 4, 1")
    A(f"v_lshl_add_u32 v{U0}, v{U1}, 5, v{U0}")
    A(f"v_lshlrev_b32 v{U0}, 4, v{U0}")
    A(f"v_lshrrev_b32 v{U1}, 5, v{VLANE}")
    A(f"v_lshl_add_u32 v{VHL}, v{U1}, 10, v{U0}")
    A(f"s_lshl_b32 s{sM}, s{sWAVE}, 12")
    A(f"s_lshl_b32 s{sMB}, s{sMT2}, 2")
    A(f"s_add_u32 s{sMB}, s{sMB}, s{sWAVE}")
    A(f"s_mul_i32 s7, s{sMB}, {H_MB_STRIDE}")
    A(f"s_mul_i32 s8, s{sKH2}, {H_MB_STRIDE//2}")
    A("s_add_u32 s7, s7, s8")
    A("s_add_u32 s24, s16, s7")
    A("s_addc_u32 s25, s17, 0")
    A("s_and_b32 s25, s25, 0xffff")
    A(f"s_mov_b32 s26, {H_MB_STRIDE//2}")
    A("s_mov_b32 s27, 0x00020000")
    A(f"v_lshrrev_b32 v{U1}, 4, v{VLANE}")
    A(f"v_bfe_u32 v{U0}, v{VLANE}, 2, 3")
    A(f"s_lshl_b32 s7, s{sKH2}, 2")
    A("s_xor_b32 s7, s7, 4")
    A(f"v_xor_b32 v{U0}, s7, v{U0}")
    A(f"v_bfe_u32 v{U2}, v{VLANE}, 2, 2")
    A(f"v_lshl_add_u32 v{U2}, v{U1}, 3, v{U2}")
    A(f"v_lshlrev_b32 v{U2}, 8, v{U2}")
    A(f"v_and_b32 v{U3}, 3, v{VLANE}")
    A(f"v_lshl_add_u32 v{U2}, v{U3}, 3, v{U2}")
    for nb in range(8):
        A(f"v_xor_b32 v{U3}, {nb}, v{U0}")
        A(f"v_lshl_add_u32 v{VRD+nb}, v{U3}, 5, v{U2}")
        A(f"v_add_u32 v{VRD+8+nb}, 98304, v{VRD+nb}")
    def hreg(slot, ks, mb): return slot*16 + ks*8 + mb*4
    A(f"s_lshr_b32 s7, s{sNT}, 4")
    A(f"s_lshl_b32 s8, s{sBLK}, 1")
    A("s_add_u32 s7, s7, s8")
    A("s_lshl_b32 s7, s7, 7")
    A(f"s_and_b32 s8, s{sNT}, 15")
    A("s_lshl_b32 s8, s8, 2")
    A("s_add_u32 s7, s7, s8")
    A(f"s_add_u32 s7, s7, {HFLAG_OFF}")
    A(f"v_mov_b32 v{VSO}, s7")
    A(f"v_mov_b32 v{U1}, {WBASE+224}")
    A(f"s_mov_b32 s{sCNT}, 0")
    if opt.get('pp'): A("s_mov_b32 s98, 16")
    A("s_mov_b32 s9, 0x40000")
    A("s_waitcnt vmcnt(1)")
    stamp(A, opt, 7)
    A.label("L_tok")
    A(f"v_readfirstlane_b32 s{sTOK}, v{VTOK}")
    A("s_nop 0")
    A(f"s_cmp_lg_u32 s{sTOK}, 0")
    A("s_cbranch_scc1 L_tok_ok")
    A("s_sleep 2")
    A(f"buffer_load_dword v{VTOK}, v{T1}, s[52:55], 0 offen sc1")
    A("s_waitcnt vmcnt(0)")
    A("s_sub_u32 s9, s9, 1")
    A("s_cbranch_scc0 L_tok")
    A.label("L_tok_ok")
    A("s_mov_b32 s9, 0x40000")
    A(f"v_mov_b32 v{VF}, s{sTOK}")
    A("s_mov_b64 exec, 1")
    A(f"buffer_store_dword v{VF}, v{VSO}, s[28:31], 0 offen sc1")
    A("s_mov_b64 exec, -1")
    def ready_mask():
        A(f"v_cmp_eq_u32 vcc, s{sTOK}, v{VPR}")
        A("s_nop 4")
        A("s_lshr_b32 s7, vcc_lo, 16")
        A(f"s_and_b32 s{sRDY}, s7, vcc_lo")
    A("s_barrier")
    def rd(st, slot, ks):
        out = []
        sa = slot_addr(slot)
        for nb in range(8):
            w = WS[st]+4*nb
            base = VRD + nb + (8 if sa >= 98304 else 0)
            off = (sa - 98304 if sa >= 98304 else sa) + ks*8192
            out.append(f"ds_read_b64_tr_b16 v[{w}:{w+1}], v{base} offset:{off}")
            out.append(f"ds_read_b64_tr_b16 v[{w+2}:{w+3}], v{base} offset:{off+1024}")
        return out
    for r in rd(0, 0, 0): A(r)
    NLATE = opt['late_ds']
    assert NLATE == 2
    emit_phase(A, None, dma2_group([2, 3, 4, 5, 8, 9, 10, 11], REG[2], 524288) + [(1, "s_nop 0"), (7, "s_nop 0")])
    A(f"s_lshr_b32 s7, s{sWAVE}, 1")
    A(f"s_add_u32 s7, s7, s{sG0}")
    A("s_cmp_eq_u32 s7, 4")
    A("s_cbranch_scc0 L_nowrap")
    for i in range(8): A(f"v_subrev_u32 v{VOW+i}, 131072, v{VOW+i}")
    A(f"s_mov_b32 s{sGB}, {(-786432) & 0xffffffff}")
    A.label("L_nowrap")
    emit_phase(A, None, dma2_group([2, 3, 4, 5, 8, 9, 10, 11], REG[3], 786432) + [(1, "s_nop 0"), (7, "s_nop 0")])
    A(f"s_mul_i32 s{sKH}, s{sG0}, {7*4096}")
    A(f"s_mul_i32 s{sKW2}, s{sG0}, 917504")
    A(f"s_add_u32 s{sKW2}, s{sKW2}, {8*131072}")
    A(f"s_cmp_eq_u32 s{sG0}, 3")
    A(f"s_cselect_b32 s{sKW2}, 131072, s{sKW2}")
    A(f"s_lshl_b32 s7, s{sG0}, 2")
    A("s_lshl_b32 s8, 15, s7")
    A(f"s_add_u32 s{sNP}, s7, 4")
    A(f"s_and_b32 s{sNP}, s{sNP}, 15")
    A(f"s_waitcnt vmcnt({1+8*NLATE})")
    A.label("L_dec")
    ready_mask()
    A(f"s_andn2_b32 s7, s8, s{sRDY}")
    A("s_cbranch_scc0 L_hgo")
    A("s_sleep 1")
    A(poll)
    A("s_waitcnt vmcnt(0)")
    A("s_sub_u32 s9, s9, 1")
    A("s_cbranch_scc0 L_dec")
    A.label("L_hgo")
    A("s_mov_b32 s9, 0x40000")
    stamp(A, opt, 10)
    if opt.get('rt'): stamp(A, opt, 2, True)
    def dma(i): return f"buffer_load_dwordx4 v{VWD+i}, s[20:23], s{sKW2} offen offset:{i*1024} lds"
    def hload(slot, ks, mb):
        a = hreg(slot, ks, mb)
        return f"buffer_load_dwordx4 a[{a}:{a+3}], v{VHL}, s[24:27], s{sKH} offen offset:{ks*2048+mb*256} sc1"
    HP = opt['h_pre']
    WD = opt['w_pre']
    assert HP == 4 and WD in (4, 5, 6)
    advh = [f"s_add_u32 s{sKH}, s{sKH}, 4096", f"s_cmp_eq_u32 s{sKH}, {28*4096}", f"s_cselect_b32 s{sKH}, 0, s{sKH}"]
    advw = [f"s_add_u32 s{sKW2}, s{sKW2}, 131072", f"s_cmp_eq_u32 s{sKW2}, {28*131072}", f"s_cselect_b32 s{sKW2}, 0, s{sKW2}"]
    seq = []
    def allowed(tag):
        if tag not in seq: return 63
        return len(seq) - 1 - max(i for i, t in enumerate(seq) if t == tag)
    for k in range(NLATE): seq.extend([('w', 4+2*k)]*8)
    for st in range(HP):
        for ks in range(2):
            for mb in range(2): A(hload(st, ks, mb))
        for x in advh: A(x)
        seq.extend([('h', st, 0)]*2 + [('h', st, 1)]*2)
    def mf(st, slot, ks, zero=False):
        out = []
        for nb in range(8):
            for mb in range(2):
                c = ACC+4*(nb*2+mb); w = WS[st]+4*nb; h = hreg(slot, ks, mb)
                out.append(f"{MF} v[{c}:{c+3}], v[{w}:{w+3}], a[{h}:{h+3}], " + ("0" if zero else f"v[{c}:{c+3}]"))
        return out
    def wplan(p):
        first = 4 + 2*NLATE
        if p == 0: return ([], list(range(first, WD+1)))
        return ([p+WD] if first <= p+WD < 28 else [], [])
    top = {}; mid = {}
    NP = 28 - opt['xl']
    for p in range(NP):
        top[p] = min(allowed(('w', p)), allowed(('h', p-1, 1)), 63)
        for w in wplan(p)[0]: seq += [('w', w)]*4
        mid[p] = min(allowed(('h', p, 0)), 63)
        seq += [('h', p+HP, 0)]*2 + [('h', p+HP, 1)]*2
        for w in wplan(p)[1]: seq += [('w', w)]*4
    LW = opt['lgw']; LG = 16 - 2*LW
    stubs = []
    def wgroup(w, gaps):
        return [(gaps[0]-1, f"s_add_u32 m0, s{sM}, {slot_addr(w % R)}")] + [(g, dma(i)) for i, g in enumerate(gaps)] + [(gaps[3], x) for x in advw]
    def period(ps, last):
        u = ps[0] % R
        pm = (u-1) % R; hs = (u+HP) % R
        if ps[0] > 0:
            A(f"s_waitcnt vmcnt({min(top[p] for p in ps)})")
            A("s_barrier")
        if opt.get('pp'):
            A("s_mov_b32 m0, s98"); A("s_nop 3"); A(f"v_writelane_b32 v{T0}, s96, m0")
            A("s_memtime s[96:97]")
            A("s_add_u32 s98, s98, 1")
        f = [(i, r) for i, r in enumerate(rd(0, u, 0))]
        f += [(2*nb-1, f"s_waitcnt lgkmcnt({LG})") for nb in range(0, 8, LW)]
        for w in wplan(ps[0])[0]: f += wgroup(w, opt['g2_dma'])
        if ps[0] in (3, 9):
            f += [(12, f"s_lshl_b32 s8, 15, s{sNP}"), (12, f"s_andn2_b32 s7, s8, s{sRDY}"), (12, f"s_cbranch_scc1 L2_w{ps[0]}"), (12, f"L2_b{ps[0]}:"),
                  (13, f"s_add_u32 s{sNP}, s{sNP}, 4"), (13, f"s_and_b32 s{sNP}, s{sNP}, 15")]
            stubs.append(ps[0])
        if ps[0] > 0: emit_phase(A, mf(1, pm, 1), f)
        f = [(i, r) for i, r in enumerate(rd(1, u, 1))]
        f += [(-1, f"s_waitcnt vmcnt({min(mid[p] for p in ps)}) lgkmcnt({LG})")]
        f += [(2*nb-1, f"s_waitcnt lgkmcnt({LG})") for nb in range(LW, 8, LW)]
        hg = opt['g2_h'] if ps[0] else [0, 1, 2, 3]
        f += [(g, hload(hs, i >> 1, i & 1)) for i, g in enumerate(hg)]
        f += [(14, x) for x in advh]
        for k, w in enumerate(wplan(ps[0])[1]): f += wgroup(w, [[5, 6, 7, 8], [10, 11, 12, 12], [14, 14, 15, 15]][k])
        if last:
            f += [(15, f"s_add_u32 s{sCNT}, s{sCNT}, 1"), (15, f"s_cmp_lt_u32 s{sCNT}, 2")]
        emit_phase(A, mf(0, u, 0, ps[0] == 0), f)
    for p in range(4): period([p], False)
    A.raw(".p2align 6")
    A.label("L2_loop")
    for p in range(4, 12): period([p, p+8], p == 11)
    A("s_cbranch_scc1 L2_loop")
    for p in range(20, NP): period([p], False)
    A.label("L2_done")
    def mft(st, items):
        out = []
        for j, (stg, ks, nb) in enumerate(items):
            for mb in range(2):
                c = ACC+4*(nb*2+mb); w = WS[st]+4*j; h = hreg(stg % R, ks, mb)
                out.append(f"{MF} v[{c}:{c+3}], v[{w}:{w+3}], a[{h}:{h+3}], v[{c}:{c+3}]")
        return out
    def rdt(st, items):
        out = []
        for j, (stg, ks, nb) in enumerate(items):
            r = rd(st, stg % R, ks)[2*nb:2*nb+2]
            w = WS[st]+4*j; wo = WS[st]+4*nb
            out.append(r[0].replace(f"v[{wo}:{wo+1}]", f"v[{w}:{w+1}]"))
            out.append(r[1].replace(f"v[{wo+2}:{wo+3}]", f"v[{w+2}:{w+3}]"))
        return out
    ph = [[(NP-1, 1, nb) for nb in range(8)]]
    for half in range(2):
        for stg in range(NP, 28): ph.append([(stg, ks, 4*half+nb) for ks in range(2) for nb in range(4)])
    XL = opt['xl']
    RCV, SUM, CV, keep = 160, 192, 96, 32
    def ld(i): return f"buffer_load_dwordx4 v[{RCV+4*i}:{RCV+4*i+3}], v{VX}, s[28:31], s{44 if i < 4 else 45} offen offset:{(i&3)*1024} sc1"
    hnext = NP - 1 + HP + 1
    wcov = NP - 1
    wnext = NP + WD
    late_bar = False
    for t, items in enumerate(ph):
        st = (t+1) & 1
        nxt = ph[t+1] if t+1 < len(ph) else None
        need = [allowed(('h', stg, ks)) for stg, ks, nb in items]
        bar = nxt is not None and nxt[0][0] > wcov
        if wnext < 28 and wnext - R == NP - 1 and not late_bar:
            assert t >= 1
            bar = True
        if bar and t >= 1: late_bar = True
        if bar:
            wcov = max(wcov, nxt[0][0])
            while wcov < 27 and ('w', wcov+1) in seq and allowed(('w', wcov+1)) >= opt['wage']: wcov += 1
            assert ('w', wcov) in seq
            need.append(allowed(('w', wcov)))
        f = []
        if min(need) < 63 and t <= XL: A(f"s_waitcnt vmcnt({min(need)})")
        if bar: A("s_barrier")
        if nxt:
            f += [(i, r) for i, r in enumerate(rdt(st ^ 1, nxt))]
            f += [(2*j-1, f"s_waitcnt lgkmcnt({LG})") for j in range(0, 8, LW)]
        else:
            f += [(2*j-1, f"s_waitcnt lgkmcnt({14-2*j})") for j in range(8)]
        if hnext < 28:
            assert hnext - R < NP - 1 or t >= 1
            f += [(g, hload(hnext % R, i >> 1, i & 1)) for i, g in enumerate(opt['g2_h'])]
            f += [(14, x) for x in advh]
            hs_ = [('h', hnext, 0)]*2 + [('h', hnext, 1)]*2
            hnext += 1
        else: hs_ = []
        if wnext < 28:
            assert (wnext - R) <= NP - 2 + (1 if late_bar else 0)
            f += wgroup(wnext, [1, 4, 8, 12])
            assert hs_ and opt['g2_h'] == [2, 6, 10, 14]
            for k in range(4): seq += [('w', wnext), hs_[k]]
            wnext += 1
        else: seq += hs_
        if t == XL-1:
            f += [(3, "s_xor_b32 s44, s42, 131072"), (4, "s_add_u32 s45, s44, 4096"),
                 (0, f"v_lshlrev_b32 v{VX}, 4, v{VLANE}"),
                 (10, f"v_and_b32 v{U2}, 15, v{VLANE}"), (10, f"v_lshlrev_b32 v{U2}, 11, v{U2}"),
                 (11, f"v_bfe_u32 v{U3}, v{VLANE}, 4, 1"), (11, f"v_lshl_add_u32 v{U2}, v{U3}, 5, v{U2}"),
                 (12, f"v_lshrrev_b32 v{U3}, 5, v{VLANE}"), (12, f"v_lshl_add_u32 v{U2}, v{U3}, 4, v{U2}"),
                 (1, f"s_lshl_b32 s7, s{sMB}, 16"), (1, f"s_lshl_b32 s8, s{sNT2}, 8"), (2, "s_add_u32 s7, s7, s8"),
                 (2, f"s_lshl_b32 s8, s{sKH2}, 7"), (3, "s_add_u32 s7, s7, s8"),
                 (13, f"v_add_u32 v{VO}, s7, v{U2}"),
                 (5, "s_mov_b32 s12, s60"), (5, "s_and_b32 s13, s61, 0xffff"), (6, f"s_mov_b32 s14, {OUT_BYTES}"), (6, "s_mov_b32 s15, 0x00020000"),
                 (7, f"s_mov_b32 s{sT}, 32768")]
        if t == XL:
            f += [(2*i, f"s_lshr_b32 s{46+i}, s{sTOK}, {8*i}") for i in range(4)]
            f += [(2*i+8, f"s_mov_b32 s{50+i}, {0x07060500 | i}") for i in range(4)]
            f += [(15, "s_mov_b32 s54, 0xffffff00")]
        if t == XL+1:
            stamp(A, opt, 11)
            if opt.get('rt'): stamp(A, opt, 3, True)
            for i in range(8):
                g = 2*i if i < 6 else 12 + (i-6)
                g = i + 3
                f += [(g, f"v_perm_b32 v{4*i+k}, v{4*i+k}, v{VF}, s{50+k}") for k in range(4)]
                f += [(g+1, f"buffer_store_dwordx4 v[{4*i}:{4*i+3}], v{VX}, s[28:31], s{42 if i < 4 else 43} offen offset:{(i&3)*1024} sc1")]
        if opt['xpoll'] and t == len(ph)-1:
            g = opt['xpoll']
            f += [(g, "s_mov_b32 exec_lo, 0"), (g, "s_brev_b32 exec_hi, 1"),
                  (g, f"buffer_load_dwordx4 v[224:227], v{VX}, s[28:31], s45 offen offset:3072 sc1"), (g, "s_mov_b64 exec, -1")]
        if t == opt['xld']:
            f += [(2*i, ld(i)) for i in range(8)]
        emit_phase(A, mft(st, items), f)
    if opt['xpoll']:
        assert opt['xld'] >= len(ph)
        A("s_mov_b32 exec_lo, 0")
        A("s_brev_b32 exec_hi, 1")
        A("s_branch L2_k0")
    elif opt['xld'] >= len(ph):
        for i in range(8): A(ld(i))
    for g in range(4):
        r = RCV + 8*g
        A(f"s_waitcnt vmcnt({6-2*g})")
        A.label(f"L2_c{g}")
        A(f"v_xor_b32 v{U0}, s46, v{r}")
        A(f"v_xor_b32 v{U1}, s46, v{r+4}")
        for k in range(1, 4):
            A(f"v_bitop3_b32 v{U0}, v{r+k}, s{46+k}, v{U0} bitop3:0xbe")
            A(f"v_bitop3_b32 v{U1}, v{r+4+k}, s{46+k}, v{U1} bitop3:0xbe")
        A(f"v_or_b32 v{U0}, v{U0}, v{U1}")
        A(f"v_and_b32 v{U0}, 0xff, v{U0}")
        A(f"v_cmp_ne_u32 vcc, 0, v{U0}")
        for k in range(8): A(f"v_and_b32 v{r+k}, s54, v{r+k}")
        A(f"s_cbranch_vccnz L2_r{g}")
        A.label(f"L2_o{g}")
        for i in range(4):
            A(f"v_pk_add_f32 v[{SUM+8*g+2*i}:{SUM+8*g+2*i+1}], v[{keep+8*g+2*i}:{keep+8*g+2*i+1}], v[{r+2*i}:{r+2*i+1}]")
        for mb in range(2):
            t = SUM + 8*g + 4*mb; d = CV + 4*((g >> 1)*2+mb) + 2*(g & 1)
            A(f"v_cvt_pk_bf16_f32 v{d}, v{t}, v{t+1}")
            A(f"v_cvt_pk_bf16_f32 v{d+1}, v{t+2}, v{t+3}")
        if g == 2:
            for mb in range(2):
                d = CV + 4*mb
                A(f"v_permlane16_swap_b32 v{d}, v{d+2}")
                A(f"v_permlane16_swap_b32 v{d+1}, v{d+3}")
    stamp(A, opt, 12)
    if opt.get('rt'): stamp(A, opt, 13, True)
    osc = opt['out_pol']
    for mb in range(2):
        d = CV + 4*mb
        A(f"buffer_store_dwordx4 v[{d}:{d+3}], v{VO}, s[12:15], {('s%d' % sT) if mb else 0} offen{osc}")
    for mb in range(2):
        d = CV + 8 + 4*mb
        A(f"v_permlane16_swap_b32 v{d}, v{d+2}")
        A(f"v_permlane16_swap_b32 v{d+1}, v{d+3}")
        A(f"buffer_store_dwordx4 v[{d}:{d+3}], v{VO}, s[12:15], {('s%d' % sT) if mb else 0} offen offset:64{osc}")
    A("s_branch L2_fin")
    for p in stubs:
        A.label(f"L2_w{p}")
        A(poll)
        A("s_waitcnt vmcnt(0)")
        ready_mask()
        A(f"s_andn2_b32 s7, s8, s{sRDY}")
        A(f"s_cbranch_scc0 L2_b{p}")
        A("s_cmp_eq_u32 s9, 0")
        A(f"s_cbranch_scc1 L2_b{p}")
        A("s_sub_u32 s9, s9, 1")
        A("s_sleep 2")
        A(f"s_branch L2_w{p}")
    TP = 224
    for g in range(4):
        A.label(f"L2_r{g}")
        A("s_mov_b32 exec_lo, 0")
        A("s_brev_b32 exec_hi, 1")
        A.label(f"L2_p{g}")
        A("s_cmp_eq_u32 s9, 0")
        A(f"s_cbranch_scc1 L2_q{g}")
        A("s_sub_u32 s9, s9, 1")
        A(f"s_sleep {opt['xsleep']}")
        A(f"buffer_load_dwordx4 v[{TP}:{TP+3}], v{VX}, s[28:31], s45 offen offset:3072 sc1")
        A.label(f"L2_k{g}")
        A("s_waitcnt vmcnt(0)")
        A(f"v_xor_b32 v{U0}, s46, v{TP}")
        for k in range(1, 4): A(f"v_bitop3_b32 v{U0}, v{TP+k}, s{46+k}, v{U0} bitop3:0xbe")
        A(f"v_and_b32 v{U0}, 0xff, v{U0}")
        A(f"v_cmp_ne_u32 vcc, 0, v{U0}")
        A("s_nop 4")
        A(f"s_cbranch_vccnz L2_p{g}")
        A("s_mov_b64 exec, -1")
        for i in range(2*g, 8): A(ld(i))
        A(f"s_waitcnt vmcnt({6-2*g})")
        A(f"s_branch L2_c{g}")
        A.label(f"L2_q{g}")
        A("s_mov_b64 exec, -1")
        A(f"s_branch L2_o{g}")
    A.label("L2_fin")
    if not opt.get('rt'): stamp(A, opt, 13)
    if opt.get('pp'):
        A("s_mov_b32 m0, s98"); A("s_nop 3"); A(f"v_writelane_b32 v{T0}, s96, m0")
        A("s_add_u32 s60, s16, 0x8200000")
        A("s_addc_u32 s61, s17, 0")
        A("s_and_b32 s61, s61, 0xffff")
        A("s_mov_b32 s62, 0x1000000")
        A("s_mov_b32 s63, 0x00020000")
        A(f"s_lshl_b32 s58, s{sGW}, 8")
        A(f"buffer_store_dword v{T0}, v{T1}, s[60:63], s58 offen")
    if opt.get('hdbg'):
        A("s_load_dwordx2 s[52:53], s[0:1], 40")
        A("s_waitcnt vmcnt(0) lgkmcnt(0)")
        stamp(A, opt, 15, True)
        A("s_waitcnt lgkmcnt(0)")
        A("s_and_b32 s53, s53, 0xffff")
        A("s_mov_b32 s54, 64")
        A("s_mov_b32 s55, 0x00020000")
        A(f"v_mov_b32 v{U0}, 0")
        for k, sl in enumerate([1, 8, 9, 2, 3, 13, 15]):
            A(f"s_sub_u32 s58, s{64+2*sl}, s{sTOK}")
            A("s_add_u32 s58, s58, 1000")
            A(f"v_writelane_b32 v{U0}, s58, {k+1}")
            A("s_sub_u32 s58, 100000, s58")
            A(f"v_writelane_b32 v{U0}, s58, {k+9}")
        A("s_mov_b64 exec, 0xfefe")
        A(f"buffer_atomic_umax v{U0}, v{T1}, s[52:55], 0 offen sc1")
    else:
        stamp_dump(A, opt, 0, sWAVE, U0)
    A.label("L_end")
    A("s_endpgm")
    if opt['cpf']:
        A.raw(f".org {name} + {opt['org']}, 0")
    return name, 256+NA+12, 256, LDS1

HEADER = """; Kernarg layout for this problem (56 bytes, ptrs only, base s[0:1]):
"""

def main():
    opt = dict(rd_gaps=[g for g in range(0, 44) if g % 4 != 3][:32],
               q0_dma=[3, 11, 19, 27, 35, 43],
               q1_dma=[3, 7, 19, 23, 27, 31, 35, 39, 43, 46, 49, 51, 53],
               q1f_dma=[1, 3, 5, 7, 10, 13, 16, 19, 23, 27, 31, 35, 39, 43, 45, 47, 49, 51, 53],
               q1j_dma=[0, 2, 4, 6, 9, 11, 13, 15, 18, 20, 22, 24, 28, 30, 32, 34, 37, 40, 43, 46, 49, 51, 53],
               pf_dist=5, jit=1, h_pre=4, fw=1, fx=1, f2=1, ep=None, pol_w=' nt', pol_x='', pol_pw='', epi_n=2, epi_plain=5, sentg=[19, 23, 27, 31, 35, 39, 43, 47], w2a=[19, 23, 27, 31, 35, 39, 43, 47], w2b=[3, 7, 11, 15, 19, 23, 27, 31], xl=6, xld=99, xpf=None, wsoff=0, cpf=3, cpf_n=3, org=36864, w_pre=6, g0=1, late_ds=2, wage=8, fwarm=1, lgw=1, xwarm=0, xpoll=1, cpf0=0, pf2_skip=0, xdelay=0, xsleep=1, out_pol='', lg2=14, g2_dma=[2, 6, 10, 14], g2_h=[2, 6, 10, 14])
    for a in sys.argv[2:]:
        k, v = a.split("=", 1)
        opt[k] = eval(v)
    A = Asm()
    name, nv, ao, lds = kernel(A, opt)
    out = HEADER
    out += f"; @launch grid=(256,1,1) block=(256,1,1) lds={lds}\n"
    out += '.amdgcn_target "amdgcn-amd-amdhsa--gfx950"\n'
    out += A.text()
    out += '.section .rodata,"a"\n'
    out += f""".p2align 6
.amdhsa_kernel {name}
  .amdhsa_next_free_vgpr {nv}
  .amdhsa_next_free_sgpr {100 if opt.get('stamps') else 64}
  .amdhsa_accum_offset {ao}
  .amdhsa_group_segment_fixed_size 0
  .amdhsa_kernarg_size 56
  .amdhsa_user_sgpr_count 2
  .amdhsa_user_sgpr_kernarg_segment_ptr 1
  .amdhsa_system_sgpr_workgroup_id_x 1
.end_amdhsa_kernel
"""
    open(sys.argv[1], "w").write(out)

main()
```

```python
import sys

class Asm:
    def __init__(self):
        self.lines = []
    def __call__(self, s):
        self.lines.append("    " + s)
    def label(self, s):
        self.lines.append(s + ":")
    def raw(self, s):
        self.lines.append(s)
    def text(self):
        return "\n".join(self.lines) + "\n"

DROP = set()
def emit_phase(A, mfmas, fillers):
    if 'rdw' in DROP: fillers = [(g, i) for g, i in fillers if not i.startswith("ds_read_b64_tr")]
    if 'rdx' in DROP: fillers = [(g, i) for g, i in fillers if not i.startswith("ds_read_b128")]
    if 'dma' in DROP: fillers = [(g, i) for g, i in fillers if not i.startswith("buffer_load")]
    g = {}
    for gap, ins in fillers:
        g.setdefault(gap, []).append(ins)
    if mfmas is None:
        for k in sorted(g):
            for ins in g[k]: A(ins)
        return
    for ins in g.get(-1, []): A(ins)
    for i, m in enumerate(mfmas):
        A(m)
        for ins in g.get(i, []): A(ins)
    assert max(g) < len(mfmas)

def place(items, gaps):
    assert len(items) <= len(gaps), (len(items), len(gaps))
    return list(zip(gaps, items))

def stamp(A, opt, i, real=False):
    if opt.get('stamps'):
        A(f"s_mem{'real' if real else ''}time s[{64+2*i}:{65+2*i}]")

def stamp_dump(A, opt, kidx, sWAVE, vt):
    if not opt.get('stamps'): return
    A("s_waitcnt vmcnt(0) lgkmcnt(0)")
    stamp(A, opt, 14)
    stamp(A, opt, 15, True)
    A("s_waitcnt lgkmcnt(0)")
    A("s_add_u32 s60, s16, 0x8000000")
    A("s_addc_u32 s61, s17, 0")
    A("s_and_b32 s61, s61, 0xffff")
    A("s_mov_b32 s62, 0x1000000")
    A("s_mov_b32 s63, 0x00020000")
    A("s_lshl_b32 s58, s2, 2")
    A(f"s_add_u32 s58, s58, s{sWAVE}")
    A(f"s_add_u32 s58, s58, {kidx*1024}")
    A("s_lshl_b32 s58, s58, 7")
    A("s_mov_b64 exec, 1")
    A(f"v_mov_b32 v{vt+1}, 0")
    for i in range(32):
        A(f"v_mov_b32 v{vt}, s{64+i}")
        A(f"buffer_store_dword v{vt}, v{vt+1}, s[60:63], s58 offen offset:{4*i}")
        A("s_nop 1")

X_BYTES = 2048*1024*2
W_BYTES = 1024*3584*2
OUT_BYTES = 2048*1024*2
H_MB_STRIDE = 224*1024
H_BYTES = 64*H_MB_STRIDE
FLAG_OFF = 32 << 20
XCH_OFF = 48 << 20
WBASE = 65536
WSLOT = 32768
LDS1 = 163840
MF = "v_mfma_f32_16x16x32_bf16"


HFLAG_OFF = 32 << 20
XFLAG_OFF = (32 << 20) + 65536
WS_RANGE = XCH_OFF + (8 << 20)

def kernel(A, opt):
    name = "standalone__glu_gated_swiglu__prompt_kernel"
    VOW, VOX, VWR, VXR = 224, 232, 240, 247
    VPX, VP2, VLANE = 249, 250, 251
    T0, T1, T2, T3 = 252, 253, 254, 255
    VPW = T3
    VTOK = T2
    WSET = [0, 56]; XSET = [112, 128]; NA = 144
    sWAVE, sKX, sKW, sMX, sMW, sDR, sCNT, sT, sXW, sWW = 32, 33, 34, 35, 36, 37, 38, 39, 40, 41
    sIW, sPF2, sC0, sSL, sRS = 42, 43, 44, 46, 47
    sIDX, sMT, sNT, sBLK = 48, 49, 50, 51
    sGW, sPX, sPW, sIX = 56, 57, 58, 59
    sC1 = 18
    sXB, sXS = 62, 63
    A.raw(".text"); A.raw(f".globl {name}"); A.raw(".p2align 8"); A.raw(f".type {name},@function")
    A.label(name)
    A("s_cmp_ge_u32 s2, 256")
    A("s_cbranch_scc1 L_end")
    stamp(A, opt, 0); stamp(A, opt, 1, True)
    A("s_load_dwordx8 s[4:11], s[0:1], 0")
    A("s_load_dwordx4 s[60:63], s[0:1], 32")
    A("s_load_dwordx2 s[16:17], s[0:1], 48")
    A(f"v_lshrrev_b32 v{T0}, 6, v0")
    A(f"v_and_b32 v{VLANE}, 63, v0")
    A("s_and_b32 s3, s2, 7")
    A(f"v_readfirstlane_b32 s{sWAVE}, v{T0}")
    A(f"s_lshr_b32 s{sIDX}, s2, 3")
    if opt['cpf0']:
        A("s_getpc_b64 s[12:13]")
        A.label("L_pc0")
        A(f"s_lshl_b32 s14, s{sIDX}, 2")
        A(f"s_add_u32 s14, s14, s{sWAVE}")
        A("s_lshl_b32 s14, s14, 6")
        A("s_load_dword s15, s[12:13], s14")
    A(f"s_and_b32 s{sMT}, s{sIDX}, 7")
    A(f"s_lshl_b32 s{sNT}, s3, 2")
    A(f"s_lshr_b32 s{sBLK}, s{sIDX}, 3")
    A(f"s_add_u32 s{sNT}, s{sNT}, s{sBLK}")
    A(f"v_lshrrev_b32 v{T0}, 4, v{VLANE}")
    A(f"v_bfe_u32 v{T1}, v{VLANE}, 1, 3")
    A(f"v_xor_b32 v{T1}, v{T1}, v{T0}")
    A(f"v_and_b32 v{T2}, 1, v{VLANE}")
    A(f"v_lshlrev_b32 v{T2}, 4, v{T2}")
    A("s_movk_i32 s55, 7168")
    A(f"v_mad_u32_u24 v{T2}, v{T0}, s55, v{T2}")
    A(f"s_and_b32 s52, s{sWAVE}, 1")
    A("s_mul_i32 s53, s52, 229376")
    A(f"s_mul_i32 s54, s{sNT}, 224")
    A("s_add_u32 s53, s53, s54")
    A(f"v_add_u32 v{T2}, s53, v{T2}")
    A("v_mov_b32 v0, 0x40000000")
    for pat in range(2):
        d = 1+pat
        if pat: A(f"v_xor_b32 v{T1}, 4, v{T1}")
        A(f"v_lshl_add_u32 v{d}, v{T1}, 5, v{T2}")
        A(f"v_cmp_eq_u32 vcc, 7, v{T1}")
        A("s_nop 1")
        A(f"v_cndmask_b32 v{d}, v{d}, v0, vcc")
    for i in range(8):
        A(f"v_add_u32 v{VOW+i}, {i*4*7168 - (i & 3)*1024}, v{1+((i>>1)&1)}")
    A(f"v_lshrrev_b32 v{T0}, 3, v{VLANE}")
    A(f"v_and_b32 v{T1}, 7, v{VLANE}")
    A(f"v_lshrrev_b32 v{T2}, 1, v{T0}")
    A(f"v_xor_b32 v{T1}, v{T1}, v{T2}")
    A(f"v_lshlrev_b32 v{T1}, 4, v{T1}")
    A(f"v_lshl_add_u32 v{T1}, v{T0}, 11, v{T1}")
    A(f"s_lshl_b32 s{sBLK}, s{sMT}, 2")
    A(f"s_add_u32 s{sBLK}, s{sBLK}, s{sWAVE}")
    A(f"s_lshl_b32 s53, s{sBLK}, 17")
    A(f"v_add_u32 v{T1}, s53, v{T1}")
    A(f"v_xor_b32 v{T2}, 64, v{T1}")
    for i in range(8):
        A(f"v_add_u32 v{VOX+i}, {i*16384 - (i & 3)*1024}, v{T2 if i & 1 else T1}")
    A(f"s_lshl_b32 s{sXW}, s{sWAVE}, 13")
    A(f"s_add_u32 s{sWW}, s{sXW}, {WBASE}")
    EP = opt['ep']
    if EP:
        A(f"s_lshl_b32 s57, s{sIDX}, 1")
        A("s_add_u32 s57, s57, s52")
        A("s_mul_i32 s57, s57, 7168")
        A("s_mul_i32 s58, s3, 896")
        A("s_add_u32 s57, s57, s58")
        A(f"s_add_u32 s57, s57, {EP[2]*458752}")
        if EP[0] == 16:
            A(f"v_lshlrev_b32 v4, 4, v{VLANE}")
            A("v_add_u32 v4, s57, v4")
            A(f"v_cmp_gt_u32 vcc, 48, v{VLANE}")
            A("s_nop 1")
            A("v_cndmask_b32 v5, v0, v4, vcc")
        else:
            n = 896 // EP[0]; sh = 6; assert EP[0] == 64
            A(f"v_mov_b32 v4, v{VLANE}")
            A("v_mov_b32 v5, 0")
            for r in range(56 // n - 1):
                A(f"v_cmp_le_u32 vcc, {n}, v4")
                A(f"v_subrev_u32 v6, {n}, v4")
                A(f"v_add_u32 v7, 458752, v5")
                A("v_cndmask_b32 v4, v4, v6, vcc")
                A("v_cndmask_b32 v5, v5, v7, vcc")
            A(f"v_lshl_add_u32 v4, v4, {sh}, v5")
            A("v_add_u32 v4, s57, v4")
            A(f"v_cmp_gt_u32 vcc, {14*min(4, EP[3])}, v{VLANE}")
            A("s_nop 1")
            A("v_cndmask_b32 v4, v0, v4, vcc")
    def early_pf():
        n = 0
        if EP[0] == 16:
            for st in range(EP[3]):
                A(f"s_mov_b32 s57, {st*458752}")
                A(f"buffer_load_dwordx4 a[{NA+8}:{NA+11}], v4, s[24:27], s57 offen")
                A(f"buffer_load_dwordx4 a[{NA+8}:{NA+11}], v5, s[24:27], s57 offen offset:1024")
                n += 2
        else:
            per = 56 // (896 // EP[0])
            for st in range(0, EP[3], per):
                A(f"s_mov_b32 s57, {st*458752}")
                A(f"buffer_load_dword a{NA+8}, v4, s[24:27], s57 offen{opt['pol_pw']}")
                n += 1
        return n
    A("s_waitcnt lgkmcnt(0)")
    if opt['wsoff']:
        A(f"s_add_u32 s16, s16, {opt['wsoff'] << 20}")
        A("s_addc_u32 s17, s17, 0")
    A(f"s_cmp_ge_u32 s{sWAVE}, 2")
    A("s_cselect_b32 s24, s8, s6")
    A("s_cselect_b32 s25, s9, s7")
    A("s_and_b32 s25, s25, 0xffff")
    A(f"s_mov_b32 s26, {W_BYTES}")
    A("s_mov_b32 s27, 0x00020000")
    A("s_mov_b32 s20, s4")
    A("s_and_b32 s21, s5, 0xffff")
    A(f"s_mov_b32 s22, {X_BYTES}")
    A("s_mov_b32 s23, 0x00020000")
    def dma_w(i): return f"buffer_load_dwordx4 v{VOW+i}, s[24:27], s{sKW} offen offset:{(i&3)*1024}{opt['pol_w']} lds"
    def dma_x(i): return f"buffer_load_dwordx4 v{VOX+i}, s[20:23], s{sKX} offen offset:{(i&3)*1024}{opt['pol_x']} lds"
    def issue_stage(st, which="wx"):
        if "w" in which:
            A(f"s_mov_b32 s{sKW}, {st*64*7168*opt['fw']}")
            for h in range(2):
                A(f"s_add_u32 m0, s{sWW}, {st*WSLOT+h*4096}")
                A("s_nop 0")
                for i in range(4*h, 4*h+4): A(dma_w(i))
        if "x" in which:
            A(f"s_mov_b32 s{sKX}, {st*128*opt['fx']}")
            for h in range(2):
                A(f"s_add_u32 m0, s{sXW}, {st*32768+h*4096}")
                A("s_nop 0")
                for i in range(4*h, 4*h+4): A(dma_x(i))
    NE = 0
    if EP and EP[1] == 0: early_pf()
    issue_stage(0)
    if EP and EP[1] == 1: NE = early_pf()
    if not opt.get('rt'): stamp(A, opt, 2)
    A(f"v_and_b32 v{T0}, 15, v{VLANE}")
    A(f"v_lshrrev_b32 v{T1}, 4, v{VLANE}")
    A(f"v_bfe_u32 v{T2}, v{VLANE}, 1, 3")
    A(f"v_xor_b32 v{T2}, v{T2}, v{T1}")
    A(f"v_lshlrev_b32 v{T2}, 4, v{T2}")
    A(f"v_lshl_add_u32 v{T2}, v{T0}, 7, v{T2}")
    A(f"v_add_u32 v{VXR}, s{sXW}, v{T2}")
    A(f"v_xor_b32 v{VXR+1}, 64, v{VXR}")
    A(f"v_bfe_u32 v{T0}, v{VLANE}, 2, 3")
    A(f"v_bfe_u32 v{T2}, v{VLANE}, 2, 2")
    A(f"v_lshl_add_u32 v{T2}, v{T1}, 3, v{T2}")
    A(f"v_lshlrev_b32 v{T2}, 8, v{T2}")
    A(f"v_and_b32 v{T3}, 3, v{VLANE}")
    A(f"v_lshl_add_u32 v{T2}, v{T3}, 3, v{T2}")
    A(f"v_add_u32 v{T2}, {WBASE}, v{T2}")
    for fb in range(7):
        A(f"v_xor_b32 v{T3}, {fb}, v{T0}")
        A(f"v_lshl_add_u32 v{VWR+fb}, v{T3}, 5, v{T2}")
    A("s_mov_b32 s12, s10")
    A("s_and_b32 s13, s11, 0xffff")
    A(f"s_mov_b32 s14, {W_BYTES}")
    A("s_mov_b32 s15, 0x00020000")
    A(f"s_lshl_b32 s{sGW}, s2, 2")
    A(f"s_add_u32 s{sGW}, s{sGW}, s{sWAVE}")
    A(f"s_lshl_b32 s57, s{sIDX}, 2")
    A(f"s_add_u32 s57, s57, s{sWAVE}")
    A("s_lshl_b32 s57, s57, 15")
    A(f"v_lshrrev_b32 v{T0}, 1, v{VLANE}")
    A(f"v_lshlrev_b32 v{T0}, 11, v{T0}")
    A(f"v_and_b32 v{T1}, 1, v{VLANE}")
    A(f"v_lshl_add_u32 v{T0}, v{T1}, 6, v{T0}")
    A(f"v_add_u32 v{T0}, s57, v{T0}")
    A(f"v_cmp_gt_u32 vcc, 32, v{VLANE}")
    A(f"s_lshl_b32 s57, s{sIDX}, 1")
    A("s_add_u32 s57, s57, s52")
    A(f"v_cndmask_b32 v{VPX}, v0, v{T0}, vcc")
    if opt['epx']:
        for st in range(opt['epx'][0], opt['epx'][0] + opt['epx'][1]):
            A(f"buffer_load_dword a{NA+8}, v{VPX}, s[20:23], 0 offen offset:{st*128}")
            NE += 1
    A("s_mul_i32 s57, s57, 7168")
    A("s_mul_i32 s58, s3, 896")
    A("s_add_u32 s57, s57, s58")
    A(f"v_lshlrev_b32 v{T1}, 6, v{VLANE}")
    A(f"v_add_u32 v{T0}, s57, v{T1}")
    A(f"v_cmp_gt_u32 vcc, 14, v{VLANE}")
    P2S = opt['pf2_skip']; P2L = -(-112 // (14 - P2S))
    A(f"s_mul_i32 s57, s{sGW}, {64*P2L}")
    A(f"s_mov_b32 s{sPF2}, {(-P2S*65536*P2L) & 0xffffffff}")
    A(f"v_cndmask_b32 v{VPW}, v0, v{T0}, vcc")
    A(f"v_add_u32 v{T0}, s57, v{T1}")
    A(f"v_cmp_gt_u32 vcc, {P2L}, v{VLANE}")
    A("s_mov_b32 s28, s16")
    A("s_and_b32 s29, s17, 0xffff")
    A(f"v_cndmask_b32 v{VP2}, v0, v{T0}, vcc")
    A(f"s_mov_b32 s30, {WS_RANGE}")
    A("s_mov_b32 s31, 0x00020000")
    A(f"s_mov_b32 s{sC0}, 0xbfb8aa3b")
    A(f"s_mov_b32 s{sC0+1}, 0xbfb8aa3b")
    A(f"s_mov_b32 s{sC1}, 1.0")
    A(f"s_mov_b32 s{sC1+1}, 1.0")
    A("s_mov_b32 s52, s62")
    A("s_and_b32 s53, s63, 0xffff")
    A("s_mov_b32 s54, 4")
    A("s_mov_b32 s55, 0x00020000")
    for i in range(4): A(f"v_accvgpr_write_b32 a{NA-4+i}, 0")
    A(f"v_lshlrev_b32 v{T1}, 2, v{VLANE}")
    A(f"v_lshlrev_b32 v{T2}, 4, v{VLANE}")
    A(f"s_lshl_b32 s{sXB}, s{sGW}, 13")
    A(f"s_add_u32 s{sXB}, s{sXB}, {XCH_OFF}")
    PFD = opt['pf_dist']
    def pf_x(so): return f"buffer_load_dword a{NA}, v{VPX}, s[20:23], {so} offen"
    def pf_w(so): return f"buffer_load_dword a{NA}, v{VPW}, s[24:27], {so} offen{opt['pol_pw']}"
    def pf_2(): return f"buffer_load_dword a{NA}, v{VP2}, s[12:15], s{sPF2} offen"
    for t in range(14):
        A(f"v_mfma_f32_32x32x16_bf16 v[{16*t}:{16*t+15}], a[{NA-4}:{NA-1}], a[{NA-4}:{NA-1}], 0")
    def acc(fb, gu, mb): return 4*((fb*2+gu)*4+mb)
    def mfmas(st):
        out = []
        for fb in range(7):
            for gu in range(2):
                for mb in range(4):
                    c = acc(fb, gu, mb); w = WSET[st]+4*(fb*2+gu); x = XSET[st]+4*mb
                    out.append(f"{MF} v[{c}:{c+3}], a[{w}:{w+3}], a[{x}:{x+3}], v[{c}:{c+3}]")
        return out
    def wreads(st, ks):
        out = []
        for fb in range(7):
            for gu in range(2):
                w = WSET[st]+4*(fb*2+gu); off = ks*8192 + gu*16384
                out.append(f"ds_read_b64_tr_b16 a[{w}:{w+1}], v{VWR+fb} offset:{off}")
                out.append(f"ds_read_b64_tr_b16 a[{w+2}:{w+3}], v{VWR+fb} offset:{off+1024}")
        return out
    def xreads(st, ks):
        return [f"ds_read_b128 a[{XSET[st]+4*mb}:{XSET[st]+4*mb+3}], v{VXR+ks} offset:{mb*2048}" for mb in range(4)]
    NPF = 3
    NV = 16 + 2*NPF
    JIT = opt['jit']
    issue_stage(1, "w" if JIT else "wx")
    if EP and EP[1] == 2: NE = early_pf()
    def code_pf(tag, lo, n):
        A("s_getpc_b64 s[6:7]")
        A.label(f"L_pc{tag}")
        A(f"s_lshl_b32 s8, s{sIDX}, 2")
        A(f"s_add_u32 s8, s8, s{sWAVE}")
        A("s_lshl_b32 s8, s8, 6")
        A(f"s_add_u32 s8, s8, {lo} - L_pc{tag}")
        A("s_add_u32 s6, s6, s8")
        A("s_addc_u32 s7, s7, 0")
        for k in range(n): A(f"s_load_dword s8, s[6:7], {8192*k}")
    if opt['cpf'] & 1: code_pf("a", "L1_loop", opt['cpf_n'])
    A(f"s_cmp_lg_u32 s{sGW}, 0")
    A("s_cbranch_scc1 L_notok")
    A("s_memrealtime s[4:5]")
    A("s_waitcnt lgkmcnt(0)")
    A("s_or_b32 s4, s4, 1")
    A(f"v_mov_b32 v{T0}, s4")
    A(f"buffer_store_dword v{T0}, v{T1}, s[52:55], 0 offen sc1")
    A.label("L_notok")
    A(f"s_mov_b32 s{sKW}, {2*64*7168*opt['fw']}")
    A(f"s_mov_b32 s{sKX}, {(128 if JIT else 256)*opt['fx']}")
    A(f"s_mov_b32 s{sIW}, {64*7168*opt['fw']}")
    A(f"s_mov_b32 s{sIX}, {128*opt['fx']}")
    A(f"s_mov_b32 s{sPX}, {PFD*128 if opt['fx'] else 0x40000000}")
    A(f"s_mov_b32 s{sPW}, {PFD*64*7168 if opt['fw'] else 0x40000000}")
    if not opt['f2']: A(f"s_mov_b32 s{sPF2}, 0x40000000")
    A(f"s_mov_b32 s{sMX}, s{sXW}")
    A(f"s_add_u32 s{sMW}, s{sWW}, {2*WSLOT}")
    A(f"s_mov_b32 s{sRS}, 0")
    A(f"s_mov_b32 s{sSL}, {WSLOT}")
    A(f"s_mov_b32 s{sCNT}, 0")
    if not opt.get('rt'): stamp(A, opt, 3)
    A(f"s_waitcnt vmcnt({(8 if JIT else 16) + NE})")
    A("s_barrier")
    stamp(A, opt, 4); stamp(A, opt, 8, True)
    for r in xreads(0, 0) + wreads(0, 0): A(r)
    rg = opt['rd_gaps']
    def q1(first):
        pre = []
        if first and JIT:
            A(f"s_add_u32 m0, s{sXW}, 32768")
            A("s_nop 0")
            for i in range(4): A(dma_x(i))
            A(f"s_add_u32 m0, s{sXW}, {32768+4096}")
        A("s_waitcnt lgkmcnt(0)")
        f = place(xreads(1, 1) + wreads(1, 1), rg)
        if first:
            dg = list(opt['q1f_dma']); nw = 8
            if JIT:
                dg = list(opt['q1j_dma'])
                f += place([dma_x(i) for i in range(4, 8)], dg[:4]); f += [(dg[3], f"s_mov_b32 s{sKX}, 256")]
                dg = dg[4:]
            f += [(dg[0]-1, f"s_mov_b32 m0, s{sMW}"), (dg[4]-1, f"s_add_u32 m0, s{sMW}, 4096")]
        else:
            dg = opt['q1_dma']; nw = 2
        f += place([dma_w(i) for i in range(8-nw, 8)], dg[0:nw])
        xg = dg[nw:nw+8]; pg = dg[nw+8:]
        f += [(xg[0]-2, "s_waitcnt lgkmcnt(8)"), (xg[0]-1, f"s_mov_b32 m0, s{sMX}"), (xg[4]-1, f"s_add_u32 m0, s{sMX}, 4096")]
        assert sum(1 for g in rg if g <= xg[0]-2) >= 12 and xg[0]-1 > dg[nw-1] and xg[4]-1 > xg[3]
        f += place([dma_x(i) for i in range(8)], xg)
        f += place([pf_w(f"s{sPW}"), pf_x(f"s{sPX}"), pf_2()], pg)
        b = max(rg)+1
        w = dg[nw-1]
        f += [(w+1, f"s_add_u32 s{sKW}, s{sKW}, s{sIW}"),
              (w+1, f"s_lshl_b32 s{sT}, s{sRS}, 15"), (w+2, f"s_add_u32 s{sMW}, s{sWW}, s{sT}"),
              (w+2, f"s_add_u32 s{sRS}, s{sRS}, 1"), (w+3, f"s_cmp_eq_u32 s{sRS}, 3"),
              (w+3, f"s_cselect_b32 s{sDR}, {(-2*WSLOT) & 0xffffffff}, s{sSL}"), (w+3, f"s_cselect_b32 s{sRS}, 0, s{sRS}")]
        assert w+3 < b
        for k in range(7):
            f.append((b+k, f"v_add_u32 v{VWR+k}, s{sDR}, v{VWR+k}"))
        f += [(b+7, f"v_xor_b32 v{VXR}, 0x8000, v{VXR}"), (b+8, f"v_xor_b32 v{VXR+1}, 0x8000, v{VXR+1}")]
        e = xg[7]+1
        f += [(e, f"s_xor_b32 s{sMX}, s{sMX}, 0x8000"), (e, f"s_add_u32 s{sKX}, s{sKX}, s{sIX}")]
        e = max(dg)+1
        assert e+1 <= 55 and b+8 <= 55
        f += [(e, f"s_add_u32 s{sPW}, s{sPW}, {64*7168}"), (e, f"s_add_u32 s{sPF2}, s{sPF2}, {65536*P2L}"), (e, f"s_add_u32 s{sPX}, s{sPX}, 128"),
              (e+1, f"s_cmp_ge_u32 s{sPX}, 2048"), (e+1, f"s_cselect_b32 s{sPX}, 0x40000000, s{sPX}"),
              (55, f"s_add_u32 s{sCNT}, s{sCNT}, 1"), (55, f"s_cmp_lt_u32 s{sCNT}, 14")]
        emit_phase(A, mfmas(0), f)
    q1(True)
    A(f"s_waitcnt vmcnt({16+NPF + (NE if (EP and EP[1] == 2 and not JIT) else 0)}) lgkmcnt(0)")
    A("s_branch L1_bar")
    A.raw(".p2align 6")
    A.label("L1_loop")
    A(f"s_waitcnt vmcnt({NV}) lgkmcnt(0)")
    A.label("L1_bar")
    A("s_barrier")
    if opt.get('pp'):
        A(f"s_mov_b32 m0, s{sCNT}"); A("s_nop 3"); A(f"v_writelane_b32 v{T0}, s96, m0")
        A("s_memtime s[96:97]")
    f = place(xreads(0, 0) + wreads(0, 0), rg)
    dg = opt['q0_dma']
    f += [(dg[0]-1, f"s_mov_b32 m0, s{sMW}"), (dg[4]-1, f"s_add_u32 m0, s{sMW}, 4096")]
    f += place([dma_w(i) for i in range(6)], dg)
    emit_phase(A, mfmas(1), f)
    q1(False)
    A("s_cbranch_scc1 L1_loop")
    sKH2, sMT2, sNT2 = 4, 5, 6
    def ppstamp(k):
        if opt.get('pp'):
            A(f"v_writelane_b32 v{T0}, s96, {k}")
            A("s_memtime s[96:97]")
    def dma2(i): return f"buffer_load_dwordx4 v{VOW+i}, s[20:23], s{sWW} offen offset:{(i&3)*1024} lds"
    def dma2_group(gaps, m0base, so):
        return [(gaps[0]-1, f"s_add_u32 m0, s{sXW}, {m0base}"), (gaps[0]-1, f"s_add_u32 s{sWW}, s{sGB}, {so}"),
                (gaps[4]-1, f"s_add_u32 m0, s{sXW}, {m0base+4096}")] + place([dma2(i) for i in range(8)], gaps)
    VH, Z3, Z0, Z1, Z2, VPO, VPR = VOX, VOX+1, VOX+2, VOX+3, VOX+4, VOX+5, VOX+6
    REG = [98304, 131072, 0, 32768]
    sG0, sGB = 57, 58
    sw = [f"s_lshr_b32 s{sKH2}, s3, 2", f"s_and_b32 s{sG0}, s3, 3", f"s_lshl_b32 s{sMT2}, s{sG0}, 2",
          f"s_and_b32 s{sNT2}, s{sIDX}, 3", f"s_add_u32 s{sMT2}, s{sMT2}, s{sNT2}", f"s_lshr_b32 s{sNT2}, s{sIDX}, 2",
          f"s_mul_i32 s7, s{sKH2}, {W_BYTES//2}", "s_add_u32 s20, s10, s7", "s_addc_u32 s21, s11, 0", "s_and_b32 s21, s21, 0xffff",
          f"s_mov_b32 s22, {W_BYTES//2}",
          f"s_lshl_b32 s7, s{sWAVE}, 16", f"s_lshl_b32 s8, s{sNT2}, 8", "s_add_u32 s7, s7, s8"]
    vw = [f"v_lshrrev_b32 v{Z0}, 4, v{VLANE}", f"v_bfe_u32 v{Z1}, v{VLANE}, 1, 3", f"v_xor_b32 v{Z1}, v{Z1}, v{Z0}",
          f"v_and_b32 v{Z2}, 1, v{VLANE}", f"v_lshlrev_b32 v{Z2}, 4, v{Z2}", f"v_lshl_add_u32 v{Z2}, v{Z0}, 11, v{Z2}",
          f"v_lshl_add_u32 v{Z2}, v{Z1}, 5, v{Z2}", f"v_add_u32 v{Z2}, s7, v{Z2}", f"v_xor_b32 v{Z0}, 128, v{Z2}"]
    vw += [f"v_add_u32 v{VOW+i}, {i*8192 - (i & 3)*1024}, v{Z0 if (i >> 1) & 1 else Z2}" for i in range(8)]
    A(f"s_waitcnt vmcnt({NV}) lgkmcnt(0)")
    A("s_barrier")
    ppstamp(14)
    f = place(xreads(0, 0) + wreads(0, 0), rg)
    f += [(i//2, x) for i, x in enumerate(sw)]
    f += [(i+1, x) for i, x in enumerate(vw)]
    f += [(7, f"s_lshl_b32 s8, s{sIDX}, 2"), (7, f"s_add_u32 s8, s8, s{sWAVE}"), (8, f"s_mul_i32 s{sGB}, s{sG0}, 917504"), (8, "s_lshl_b32 s8, s8, 13"), (9, f"s_add_u32 s8, s8, s{sGB}"), (9, f"s_sub_u32 s9, s8, {28*131072}"),
          (10, "s_cselect_b32 s8, s8, s9"), (10, "s_add_u32 s9, s8, 4096"),
          (0, f"v_lshlrev_b32 v{Z3}, 6, v{VLANE}"),
          (11, f"buffer_load_dword a{NA}, v{Z3}, s[20:23], s8 offen"), (15, f"buffer_load_dword a{NA}, v{Z3}, s[20:23], s9 offen")]
    NXW = 0
    if opt['xwarm']:
        NXW = opt['xwarm']
        f += [(19, f"v_lshlrev_b32 v{Z3}, 7, v{VLANE}")]
        f += [(23+4*i, f"buffer_load_dword a{NA}, v{Z3}, s[28:31], s{sXB} offen offset:{64*i}") for i in range(NXW)]
    emit_phase(A, mfmas(1), f)
    A("s_waitcnt lgkmcnt(0)")
    f = place(xreads(1, 1) + wreads(1, 1), rg)
    f += dma2_group(opt['w2a'], REG[0], 0)
    b = max(rg)+1
    f += [(b+k, f"v_add_u32 v{VWR+k}, {(-2*WSLOT) & 0xffffffff}, v{VWR+k}") for k in range(7)]
    f += [(b+7, f"v_xor_b32 v{VXR}, 0x8000, v{VXR}"), (b+8, f"v_xor_b32 v{VXR+1}, 0x8000, v{VXR+1}")]
    emit_phase(A, mfmas(0), f)
    A(f"s_waitcnt vmcnt({NPF+10+NXW}) lgkmcnt(0)")
    A("s_barrier")
    ppstamp(15)
    f = place(xreads(0, 0) + wreads(0, 0), rg)
    f += dma2_group(opt['w2b'], REG[1], 262144)
    f += [(13, f"s_lshl_b32 s8, s{sMT2}, 2"), (14, f"s_add_u32 s8, s8, s{sKH2}"), (15, "s_lshl_b32 s8, s8, 7"), (16, f"s_add_u32 s8, s8, {HFLAG_OFF}"),
          (13, f"v_and_b32 v{VPO}, 60, v{T1}"), (14, f"v_bfe_u32 v{Z0}, v{VLANE}, 4, 1"), (15, f"v_lshl_add_u32 v{VPO}, v{Z0}, 8, v{VPO}"),
          (17, f"v_add_u32 v{VPO}, s8, v{VPO}")]
    if opt['fwarm']: f += [(35, f"buffer_load_dword v{VPR}, v{VPO}, s[28:31], 0 offen sc1")]
    f += [(0, f"s_lshl_b32 s7, s{sBLK}, 1"), (1, f"s_mul_i32 s7, s7, {H_MB_STRIDE}"), (4, f"s_mul_i32 s8, s{sNT}, 7168"),
          (5, "s_add_u32 s7, s7, s8"), (8, f"v_add_u32 v{VH}, s7, v{T2}")]
    f += [(9, f"s_mov_b32 s42, s{sXB}"), (12, "s_add_u32 s43, s42, 4096")]
    f += [(54, f"buffer_load_dword v{VTOK}, v{T1}, s[52:55], 0 offen sc1")]
    emit_phase(A, mfmas(1), f)
    A.label("L1_done")
    stamp(A, opt, 5); stamp(A, opt, 9, True)
    A("s_waitcnt lgkmcnt(0)")
    def epi(fb, p):
        o = []
        g = acc(fb, 0, 2*p); u = acc(fb, 1, 2*p)
        for i in range(4): o.append(f"v_pk_mul_f32 v[{u+2*i}:{u+2*i+1}], v[{g+2*i}:{g+2*i+1}], v[{u+2*i}:{u+2*i+1}]")
        for i in range(4): o.append(f"v_pk_mul_f32 v[{g+2*i}:{g+2*i+1}], v[{g+2*i}:{g+2*i+1}], s[{sC0}:{sC0+1}]")
        for i in range(8): o.append(f"v_exp_f32 v{g+i}, v{g+i}")
        for i in range(4): o.append(f"v_pk_add_f32 v[{g+2*i}:{g+2*i+1}], v[{g+2*i}:{g+2*i+1}], s[{sC1}:{sC1+1}]")
        for i in range(8): o.append(f"v_rcp_f32 v{g+i}, v{g+i}")
        for i in range(4): o.append(f"v_pk_mul_f32 v[{u+2*i}:{u+2*i+1}], v[{g+2*i}:{g+2*i+1}], v[{u+2*i}:{u+2*i+1}]")
        for i in range(4): o.append(f"v_cvt_pk_bf16_f32 v{g+i}, v{u+2*i}, v{u+2*i+1}")
        o.append(f"s_mov_b32 s{sT}, {p*H_MB_STRIDE + (fb//4)*4096}")
        o.append("s_nop 0")
        o.append(f"v_permlane16_swap_b32 v{g}, v{g+2}")
        o.append(f"v_permlane16_swap_b32 v{g+1}, v{g+3}")
        o.append(f"buffer_store_dwordx4 v[{g}:{g+3}], v{VH}, s[28:31], s{sT} offen offset:{(fb%4)*1024} sc1")
        return o
    m0s, m1s = mfmas(0), mfmas(1)
    order = [('A', 0)]
    for k in range(6): order += [('A', k+1), ('B', k)]
    order += [('B', 6)]
    ml = []; done = {}
    f = [(i, r) for i, r in enumerate(xreads(1, 1) + wreads(1, 1))]
    for kind, fb in order:
        if kind == 'B':
            issued = min(32, len(ml)); need = 8 + 4*fb
            f.append((len(ml)-1, f"s_waitcnt lgkmcnt({min(15, issued-need)})"))
        ml += (m0s if kind == 'A' else m1s)[8*fb:8*fb+8]
        if kind == 'B': done[fb] = len(ml)
    stream = [(fb, ins) for fb in range(7) for p in range(2) for ins in epi(fb, p)]
    pos = 0
    if opt['epi_plain']:
        nfb = opt['epi_plain']
        pre = []
        for fb in range(nfb):
            for p in range(2):
                g = acc(fb, 0, 2*p); u = acc(fb, 1, 2*p)
                pre += [(fb, f"v_mul_f32 v{u+i}, v{g+i}, v{u+i}") for i in range(8)]
                pre += [(fb, f"v_mul_f32 v{g+i}, s{sC0}, v{g+i}") for i in range(8)]
        rest = [(7, ins) for fb in range(7) for p in range(2) for ins in (epi(fb, p)[8:] if fb < nfb else epi(fb, p))]
        stream = pre + rest; done[7] = 10**6
    for gap in range(done[0]+2, len(ml)):
        for _ in range(opt['epi_n']):
            if done[stream[pos][0]] + 2 <= gap:
                f.append((gap, stream[pos][1])); pos += 1
    emit_phase(A, ml, f)
    if opt['cpf'] & 2:
        A("s_getpc_b64 s[10:11]")
        A.label("L_pcb")
        A(f"s_lshl_b32 s8, s{sIDX}, 2")
        A(f"s_add_u32 s8, s8, s{sWAVE}")
        A("s_lshl_b32 s8, s8, 6")
        A("s_add_u32 s8, s8, L_hgo - L_pcb")
        A("s_add_u32 s10, s10, s8")
        A("s_addc_u32 s11, s11, 0")
        for k in range(2): A(f"s_load_dword s63, s[10:11], {8192*k}")
    assert stream[pos][0] <= 4 or stream[pos][0] == 7
    for fb, ins in stream[pos:]: A(ins)
    poll = f"buffer_load_dword v{VPR}, v{VPO}, s[28:31], 0 offen sc1"
    A(poll)
    stamp(A, opt, 6)
    R = 8
    ACC = 0; WS = [64, 96]; VWD = 128; VRD = 132
    VHL, VO, VX, VF = 148, 149, 150, 151
    U0, U1, U2, U3 = 152, 153, 154, 155
    VSO = 157
    sRDY, sNP = 46, 47
    sKW2, sKH, sM, sTOK, sMB = 33, 34, 35, 36, 37
    def slot_addr(k): return REG[k >> 1] + (k & 1)*16384
    A(f"s_lshl_b32 s7, s{sWAVE}, 15")
    for i in range(4): A(f"v_subrev_u32 v{VWD+i}, s7, v{VOW+i}")
    A(f"v_and_b32 v{U0}, 15, v{VLANE}")
    A(f"v_bfe_u32 v{U1}, v{VLANE}, 4, 1")
    A(f"v_lshl_add_u32 v{U0}, v{U1}, 5, v{U0}")
    A(f"v_lshlrev_b32 v{U0}, 4, v{U0}")
    A(f"v_lshrrev_b32 v{U1}, 5, v{VLANE}")
    A(f"v_lshl_add_u32 v{VHL}, v{U1}, 10, v{U0}")
    A(f"s_lshl_b32 s{sM}, s{sWAVE}, 12")
    A(f"s_lshl_b32 s{sMB}, s{sMT2}, 2")
    A(f"s_add_u32 s{sMB}, s{sMB}, s{sWAVE}")
    A(f"s_mul_i32 s7, s{sMB}, {H_MB_STRIDE}")
    A(f"s_mul_i32 s8, s{sKH2}, {H_MB_STRIDE//2}")
    A("s_add_u32 s7, s7, s8")
    A("s_add_u32 s24, s16, s7")
    A("s_addc_u32 s25, s17, 0")
    A("s_and_b32 s25, s25, 0xffff")
    A(f"s_mov_b32 s26, {H_MB_STRIDE//2}")
    A("s_mov_b32 s27, 0x00020000")
    A(f"v_lshrrev_b32 v{U1}, 4, v{VLANE}")
    A(f"v_bfe_u32 v{U0}, v{VLANE}, 2, 3")
    A(f"s_lshl_b32 s7, s{sKH2}, 2")
    A("s_xor_b32 s7, s7, 4")
    A(f"v_xor_b32 v{U0}, s7, v{U0}")
    A(f"v_bfe_u32 v{U2}, v{VLANE}, 2, 2")
    A(f"v_lshl_add_u32 v{U2}, v{U1}, 3, v{U2}")
    A(f"v_lshlrev_b32 v{U2}, 8, v{U2}")
    A(f"v_and_b32 v{U3}, 3, v{VLANE}")
    A(f"v_lshl_add_u32 v{U2}, v{U3}, 3, v{U2}")
    for nb in range(8):
        A(f"v_xor_b32 v{U3}, {nb}, v{U0}")
        A(f"v_lshl_add_u32 v{VRD+nb}, v{U3}, 5, v{U2}")
        A(f"v_add_u32 v{VRD+8+nb}, 98304, v{VRD+nb}")
    def hreg(slot, ks, mb): return slot*16 + ks*8 + mb*4
    A(f"s_lshr_b32 s7, s{sNT}, 4")
    A(f"s_lshl_b32 s8, s{sBLK}, 1")
    A("s_add_u32 s7, s7, s8")
    A("s_lshl_b32 s7, s7, 7")
    A(f"s_and_b32 s8, s{sNT}, 15")
    A("s_lshl_b32 s8, s8, 2")
    A("s_add_u32 s7, s7, s8")
    A(f"s_add_u32 s7, s7, {HFLAG_OFF}")
    A(f"v_mov_b32 v{VSO}, s7")
    A(f"v_mov_b32 v{U1}, {WBASE+224}")
    A(f"s_mov_b32 s{sCNT}, 0")
    if opt.get('pp'): A("s_mov_b32 s98, 16")
    A("s_mov_b32 s9, 0x40000")
    A("s_waitcnt vmcnt(1)")
    stamp(A, opt, 7)
    A.label("L_tok")
    A(f"v_readfirstlane_b32 s{sTOK}, v{VTOK}")
    A("s_nop 0")
    A(f"s_cmp_lg_u32 s{sTOK}, 0")
    A("s_cbranch_scc1 L_tok_ok")
    A("s_sleep 2")
    A(f"buffer_load_dword v{VTOK}, v{T1}, s[52:55], 0 offen sc1")
    A("s_waitcnt vmcnt(0)")
    A("s_sub_u32 s9, s9, 1")
    A("s_cbranch_scc0 L_tok")
    A.label("L_tok_ok")
    A("s_mov_b32 s9, 0x40000")
    A(f"v_mov_b32 v{VF}, s{sTOK}")
    A("s_mov_b64 exec, 1")
    A(f"buffer_store_dword v{VF}, v{VSO}, s[28:31], 0 offen sc1")
    A("s_mov_b64 exec, -1")
    def ready_mask():
        A(f"v_cmp_eq_u32 vcc, s{sTOK}, v{VPR}")
        A("s_nop 4")
        A("s_lshr_b32 s7, vcc_lo, 16")
        A(f"s_and_b32 s{sRDY}, s7, vcc_lo")
    A("s_barrier")
    def rd(st, slot, ks):
        out = []
        sa = slot_addr(slot)
        for nb in range(8):
            w = WS[st]+4*nb
            base = VRD + nb + (8 if sa >= 98304 else 0)
            off = (sa - 98304 if sa >= 98304 else sa) + ks*8192
            out.append(f"ds_read_b64_tr_b16 v[{w}:{w+1}], v{base} offset:{off}")
            out.append(f"ds_read_b64_tr_b16 v[{w+2}:{w+3}], v{base} offset:{off+1024}")
        return out
    for r in rd(0, 0, 0): A(r)
    NLATE = opt['late_ds']
    assert NLATE == 2
    emit_phase(A, None, dma2_group([2, 3, 4, 5, 8, 9, 10, 11], REG[2], 524288) + [(1, "s_nop 0"), (7, "s_nop 0")])
    A(f"s_lshr_b32 s7, s{sWAVE}, 1")
    A(f"s_add_u32 s7, s7, s{sG0}")
    A("s_cmp_eq_u32 s7, 4")
    A("s_cbranch_scc0 L_nowrap")
    for i in range(8): A(f"v_subrev_u32 v{VOW+i}, 131072, v{VOW+i}")
    A(f"s_mov_b32 s{sGB}, {(-786432) & 0xffffffff}")
    A.label("L_nowrap")
    emit_phase(A, None, dma2_group([2, 3, 4, 5, 8, 9, 10, 11], REG[3], 786432) + [(1, "s_nop 0"), (7, "s_nop 0")])
    A(f"s_mul_i32 s{sKH}, s{sG0}, {7*4096}")
    A(f"s_mul_i32 s{sKW2}, s{sG0}, 917504")
    A(f"s_add_u32 s{sKW2}, s{sKW2}, {8*131072}")
    A(f"s_cmp_eq_u32 s{sG0}, 3")
    A(f"s_cselect_b32 s{sKW2}, 131072, s{sKW2}")
    A(f"s_lshl_b32 s7, s{sG0}, 2")
    A("s_lshl_b32 s8, 15, s7")
    A(f"s_add_u32 s{sNP}, s7, 4")
    A(f"s_and_b32 s{sNP}, s{sNP}, 15")
    A(f"s_waitcnt vmcnt({1+8*NLATE})")
    A.label("L_dec")
    ready_mask()
    A(f"s_andn2_b32 s7, s8, s{sRDY}")
    A("s_cbranch_scc0 L_hgo")
    A("s_sleep 1")
    A(poll)
    A("s_waitcnt vmcnt(0)")
    A("s_sub_u32 s9, s9, 1")
    A("s_cbranch_scc0 L_dec")
    A.label("L_hgo")
    A("s_mov_b32 s9, 0x40000")
    stamp(A, opt, 10)
    if opt.get('rt'): stamp(A, opt, 2, True)
    def dma(i): return f"buffer_load_dwordx4 v{VWD+i}, s[20:23], s{sKW2} offen offset:{i*1024} lds"
    def hload(slot, ks, mb):
        a = hreg(slot, ks, mb)
        return f"buffer_load_dwordx4 a[{a}:{a+3}], v{VHL}, s[24:27], s{sKH} offen offset:{ks*2048+mb*256} sc1"
    HP = opt['h_pre']
    WD = opt['w_pre']
    assert HP == 4 and WD in (4, 5, 6)
    advh = [f"s_add_u32 s{sKH}, s{sKH}, 4096", f"s_cmp_eq_u32 s{sKH}, {28*4096}", f"s_cselect_b32 s{sKH}, 0, s{sKH}"]
    advw = [f"s_add_u32 s{sKW2}, s{sKW2}, 131072", f"s_cmp_eq_u32 s{sKW2}, {28*131072}", f"s_cselect_b32 s{sKW2}, 0, s{sKW2}"]
    seq = []
    def allowed(tag):
        if tag not in seq: return 63
        return len(seq) - 1 - max(i for i, t in enumerate(seq) if t == tag)
    for k in range(NLATE): seq.extend([('w', 4+2*k)]*8)
    for st in range(HP):
        for ks in range(2):
            for mb in range(2): A(hload(st, ks, mb))
        for x in advh: A(x)
        seq.extend([('h', st, 0)]*2 + [('h', st, 1)]*2)
    def mf(st, slot, ks, zero=False):
        out = []
        for nb in range(8):
            for mb in range(2):
                c = ACC+4*(nb*2+mb); w = WS[st]+4*nb; h = hreg(slot, ks, mb)
                out.append(f"{MF} v[{c}:{c+3}], v[{w}:{w+3}], a[{h}:{h+3}], " + ("0" if zero else f"v[{c}:{c+3}]"))
        return out
    def wplan(p):
        first = 4 + 2*NLATE
        if p == 0: return ([], list(range(first, WD+1)))
        return ([p+WD] if first <= p+WD < 28 else [], [])
    top = {}; mid = {}
    NP = 28 - opt['xl']
    for p in range(NP):
        top[p] = min(allowed(('w', p)), allowed(('h', p-1, 1)), 63)
        for w in wplan(p)[0]: seq += [('w', w)]*4
        mid[p] = min(allowed(('h', p, 0)), 63)
        seq += [('h', p+HP, 0)]*2 + [('h', p+HP, 1)]*2
        for w in wplan(p)[1]: seq += [('w', w)]*4
    LW = opt['lgw']; LG = 16 - 2*LW
    stubs = []
    def wgroup(w, gaps):
        return [(gaps[0]-1, f"s_add_u32 m0, s{sM}, {slot_addr(w % R)}")] + [(g, dma(i)) for i, g in enumerate(gaps)] + [(gaps[3], x) for x in advw]
    def period(ps, last):
        u = ps[0] % R
        pm = (u-1) % R; hs = (u+HP) % R
        if ps[0] > 0:
            A(f"s_waitcnt vmcnt({min(top[p] for p in ps)})")
            A("s_barrier")
        if opt.get('pp'):
            A("s_mov_b32 m0, s98"); A("s_nop 3"); A(f"v_writelane_b32 v{T0}, s96, m0")
            A("s_memtime s[96:97]")
            A("s_add_u32 s98, s98, 1")
        f = [(i, r) for i, r in enumerate(rd(0, u, 0))]
        f += [(2*nb-1, f"s_waitcnt lgkmcnt({LG})") for nb in range(0, 8, LW)]
        for w in wplan(ps[0])[0]: f += wgroup(w, opt['g2_dma'])
        if ps[0] in (3, 9):
            f += [(12, f"s_lshl_b32 s8, 15, s{sNP}"), (12, f"s_andn2_b32 s7, s8, s{sRDY}"), (12, f"s_cbranch_scc1 L2_w{ps[0]}"), (12, f"L2_b{ps[0]}:"),
                  (13, f"s_add_u32 s{sNP}, s{sNP}, 4"), (13, f"s_and_b32 s{sNP}, s{sNP}, 15")]
            stubs.append(ps[0])
        if ps[0] > 0: emit_phase(A, mf(1, pm, 1), f)
        f = [(i, r) for i, r in enumerate(rd(1, u, 1))]
        f += [(-1, f"s_waitcnt vmcnt({min(mid[p] for p in ps)}) lgkmcnt({LG})")]
        f += [(2*nb-1, f"s_waitcnt lgkmcnt({LG})") for nb in range(LW, 8, LW)]
        hg = opt['g2_h'] if ps[0] else [0, 1, 2, 3]
        f += [(g, hload(hs, i >> 1, i & 1)) for i, g in enumerate(hg)]
        f += [(14, x) for x in advh]
        for k, w in enumerate(wplan(ps[0])[1]): f += wgroup(w, [[5, 6, 7, 8], [10, 11, 12, 12], [14, 14, 15, 15]][k])
        if last:
            f += [(15, f"s_add_u32 s{sCNT}, s{sCNT}, 1"), (15, f"s_cmp_lt_u32 s{sCNT}, 2")]
        emit_phase(A, mf(0, u, 0, ps[0] == 0), f)
    for p in range(4): period([p], False)
    A.raw(".p2align 6")
    A.label("L2_loop")
    for p in range(4, 12): period([p, p+8], p == 11)
    A("s_cbranch_scc1 L2_loop")
    for p in range(20, NP): period([p], False)
    A.label("L2_done")
    def mft(st, items):
        out = []
        for j, (stg, ks, nb) in enumerate(items):
            for mb in range(2):
                c = ACC+4*(nb*2+mb); w = WS[st]+4*j; h = hreg(stg % R, ks, mb)
                out.append(f"{MF} v[{c}:{c+3}], v[{w}:{w+3}], a[{h}:{h+3}], v[{c}:{c+3}]")
        return out
    def rdt(st, items):
        out = []
        for j, (stg, ks, nb) in enumerate(items):
            r = rd(st, stg % R, ks)[2*nb:2*nb+2]
            w = WS[st]+4*j; wo = WS[st]+4*nb
            out.append(r[0].replace(f"v[{wo}:{wo+1}]", f"v[{w}:{w+1}]"))
            out.append(r[1].replace(f"v[{wo+2}:{wo+3}]", f"v[{w+2}:{w+3}]"))
        return out
    ph = [[(NP-1, 1, nb) for nb in range(8)]]
    for half in range(2):
        for stg in range(NP, 28): ph.append([(stg, ks, 4*half+nb) for ks in range(2) for nb in range(4)])
    XL = opt['xl']
    RCV, SUM, CV, keep = 160, 192, 96, 32
    def ld(i): return f"buffer_load_dwordx4 v[{RCV+4*i}:{RCV+4*i+3}], v{VX}, s[28:31], s{44 if i < 4 else 45} offen offset:{(i&3)*1024} sc1"
    hnext = NP - 1 + HP + 1
    wcov = NP - 1
    wnext = NP + WD
    late_bar = False
    for t, items in enumerate(ph):
        st = (t+1) & 1
        nxt = ph[t+1] if t+1 < len(ph) else None
        need = [allowed(('h', stg, ks)) for stg, ks, nb in items]
        bar = nxt is not None and nxt[0][0] > wcov
        if wnext < 28 and wnext - R == NP - 1 and not late_bar:
            assert t >= 1
            bar = True
        if bar and t >= 1: late_bar = True
        if bar:
            wcov = max(wcov, nxt[0][0])
            while wcov < 27 and ('w', wcov+1) in seq and allowed(('w', wcov+1)) >= opt['wage']: wcov += 1
            assert ('w', wcov) in seq
            need.append(allowed(('w', wcov)))
        f = []
        if min(need) < 63 and t <= XL: A(f"s_waitcnt vmcnt({min(need)})")
        if bar: A("s_barrier")
        if nxt:
            f += [(i, r) for i, r in enumerate(rdt(st ^ 1, nxt))]
            f += [(2*j-1, f"s_waitcnt lgkmcnt({LG})") for j in range(0, 8, LW)]
        else:
            f += [(2*j-1, f"s_waitcnt lgkmcnt({14-2*j})") for j in range(8)]
        if hnext < 28:
            assert hnext - R < NP - 1 or t >= 1
            f += [(g, hload(hnext % R, i >> 1, i & 1)) for i, g in enumerate(opt['g2_h'])]
            f += [(14, x) for x in advh]
            hs_ = [('h', hnext, 0)]*2 + [('h', hnext, 1)]*2
            hnext += 1
        else: hs_ = []
        if wnext < 28:
            assert (wnext - R) <= NP - 2 + (1 if late_bar else 0)
            f += wgroup(wnext, [1, 4, 8, 12])
            assert hs_ and opt['g2_h'] == [2, 6, 10, 14]
            for k in range(4): seq += [('w', wnext), hs_[k]]
            wnext += 1
        else: seq += hs_
        if t == XL-1:
            f += [(3, "s_xor_b32 s44, s42, 131072"), (4, "s_add_u32 s45, s44, 4096"),
                 (0, f"v_lshlrev_b32 v{VX}, 4, v{VLANE}"),
                 (10, f"v_and_b32 v{U2}, 15, v{VLANE}"), (10, f"v_lshlrev_b32 v{U2}, 11, v{U2}"),
                 (11, f"v_bfe_u32 v{U3}, v{VLANE}, 4, 1"), (11, f"v_lshl_add_u32 v{U2}, v{U3}, 5, v{U2}"),
                 (12, f"v_lshrrev_b32 v{U3}, 5, v{VLANE}"), (12, f"v_lshl_add_u32 v{U2}, v{U3}, 4, v{U2}"),
                 (1, f"s_lshl_b32 s7, s{sMB}, 16"), (1, f"s_lshl_b32 s8, s{sNT2}, 8"), (2, "s_add_u32 s7, s7, s8"),
                 (2, f"s_lshl_b32 s8, s{sKH2}, 7"), (3, "s_add_u32 s7, s7, s8"),
                 (13, f"v_add_u32 v{VO}, s7, v{U2}"),
                 (5, "s_mov_b32 s12, s60"), (5, "s_and_b32 s13, s61, 0xffff"), (6, f"s_mov_b32 s14, {OUT_BYTES}"), (6, "s_mov_b32 s15, 0x00020000"),
                 (7, f"s_mov_b32 s{sT}, 32768")]
        if t == XL:
            f += [(2*i, f"s_lshr_b32 s{46+i}, s{sTOK}, {8*i}") for i in range(4)]
            f += [(2*i+8, f"s_mov_b32 s{50+i}, {0x07060500 | i}") for i in range(4)]
            f += [(15, "s_mov_b32 s54, 0xffffff00")]
        if t == XL+1:
            stamp(A, opt, 11)
            if opt.get('rt'): stamp(A, opt, 3, True)
            for i in range(8):
                g = 2*i if i < 6 else 12 + (i-6)
                g = i + 3
                f += [(g, f"v_perm_b32 v{4*i+k}, v{4*i+k}, v{VF}, s{50+k}") for k in range(4)]
                f += [(g+1, f"buffer_store_dwordx4 v[{4*i}:{4*i+3}], v{VX}, s[28:31], s{42 if i < 4 else 43} offen offset:{(i&3)*1024} sc1")]
        if opt['xpoll'] and t == len(ph)-1:
            g = opt['xpoll']
            f += [(g, "s_mov_b32 exec_lo, 0"), (g, "s_brev_b32 exec_hi, 1"),
                  (g, f"buffer_load_dwordx4 v[224:227], v{VX}, s[28:31], s45 offen offset:3072 sc1"), (g, "s_mov_b64 exec, -1")]
        if t == opt['xld']:
            f += [(2*i, ld(i)) for i in range(8)]
        emit_phase(A, mft(st, items), f)
    if opt['xpoll']:
        assert opt['xld'] >= len(ph)
        A("s_mov_b32 exec_lo, 0")
        A("s_brev_b32 exec_hi, 1")
        A("s_branch L2_k0")
    elif opt['xld'] >= len(ph):
        for i in range(8): A(ld(i))
    for g in range(4):
        r = RCV + 8*g
        A(f"s_waitcnt vmcnt({6-2*g})")
        A.label(f"L2_c{g}")
        A(f"v_xor_b32 v{U0}, s46, v{r}")
        A(f"v_xor_b32 v{U1}, s46, v{r+4}")
        for k in range(1, 4):
            A(f"v_bitop3_b32 v{U0}, v{r+k}, s{46+k}, v{U0} bitop3:0xbe")
            A(f"v_bitop3_b32 v{U1}, v{r+4+k}, s{46+k}, v{U1} bitop3:0xbe")
        A(f"v_or_b32 v{U0}, v{U0}, v{U1}")
        A(f"v_and_b32 v{U0}, 0xff, v{U0}")
        A(f"v_cmp_ne_u32 vcc, 0, v{U0}")
        for k in range(8): A(f"v_and_b32 v{r+k}, s54, v{r+k}")
        A(f"s_cbranch_vccnz L2_r{g}")
        A.label(f"L2_o{g}")
        for i in range(4):
            A(f"v_pk_add_f32 v[{SUM+8*g+2*i}:{SUM+8*g+2*i+1}], v[{keep+8*g+2*i}:{keep+8*g+2*i+1}], v[{r+2*i}:{r+2*i+1}]")
        for mb in range(2):
            t = SUM + 8*g + 4*mb; d = CV + 4*((g >> 1)*2+mb) + 2*(g & 1)
            A(f"v_cvt_pk_bf16_f32 v{d}, v{t}, v{t+1}")
            A(f"v_cvt_pk_bf16_f32 v{d+1}, v{t+2}, v{t+3}")
        if g == 2:
            for mb in range(2):
                d = CV + 4*mb
                A(f"v_permlane16_swap_b32 v{d}, v{d+2}")
                A(f"v_permlane16_swap_b32 v{d+1}, v{d+3}")
    stamp(A, opt, 12)
    if opt.get('rt'): stamp(A, opt, 13, True)
    osc = opt['out_pol']
    for mb in range(2):
        d = CV + 4*mb
        A(f"buffer_store_dwordx4 v[{d}:{d+3}], v{VO}, s[12:15], {('s%d' % sT) if mb else 0} offen{osc}")
    for mb in range(2):
        d = CV + 8 + 4*mb
        A(f"v_permlane16_swap_b32 v{d}, v{d+2}")
        A(f"v_permlane16_swap_b32 v{d+1}, v{d+3}")
        A(f"buffer_store_dwordx4 v[{d}:{d+3}], v{VO}, s[12:15], {('s%d' % sT) if mb else 0} offen offset:64{osc}")
    A("s_branch L2_fin")
    for p in stubs:
        A.label(f"L2_w{p}")
        A(poll)
        A("s_waitcnt vmcnt(0)")
        ready_mask()
        A(f"s_andn2_b32 s7, s8, s{sRDY}")
        A(f"s_cbranch_scc0 L2_b{p}")
        A("s_cmp_eq_u32 s9, 0")
        A(f"s_cbranch_scc1 L2_b{p}")
        A("s_sub_u32 s9, s9, 1")
        A("s_sleep 2")
        A(f"s_branch L2_w{p}")
    TP = 224
    for g in range(4):
        A.label(f"L2_r{g}")
        A("s_mov_b32 exec_lo, 0")
        A("s_brev_b32 exec_hi, 1")
        A.label(f"L2_p{g}")
        A("s_cmp_eq_u32 s9, 0")
        A(f"s_cbranch_scc1 L2_q{g}")
        A("s_sub_u32 s9, s9, 1")
        A(f"s_sleep {opt['xsleep']}")
        A(f"buffer_load_dwordx4 v[{TP}:{TP+3}], v{VX}, s[28:31], s45 offen offset:3072 sc1")
        A.label(f"L2_k{g}")
        A("s_waitcnt vmcnt(0)")
        A(f"v_xor_b32 v{U0}, s46, v{TP}")
        for k in range(1, 4): A(f"v_bitop3_b32 v{U0}, v{TP+k}, s{46+k}, v{U0} bitop3:0xbe")
        A(f"v_and_b32 v{U0}, 0xff, v{U0}")
        A(f"v_cmp_ne_u32 vcc, 0, v{U0}")
        A("s_nop 4")
        A(f"s_cbranch_vccnz L2_p{g}")
        A("s_mov_b64 exec, -1")
        for i in range(2*g, 8): A(ld(i))
        A(f"s_waitcnt vmcnt({6-2*g})")
        A(f"s_branch L2_c{g}")
        A.label(f"L2_q{g}")
        A("s_mov_b64 exec, -1")
        A(f"s_branch L2_o{g}")
    A.label("L2_fin")
    if not opt.get('rt'): stamp(A, opt, 13)
    if opt.get('pp'):
        A("s_mov_b32 m0, s98"); A("s_nop 3"); A(f"v_writelane_b32 v{T0}, s96, m0")
        A("s_add_u32 s60, s16, 0x8200000")
        A("s_addc_u32 s61, s17, 0")
        A("s_and_b32 s61, s61, 0xffff")
        A("s_mov_b32 s62, 0x1000000")
        A("s_mov_b32 s63, 0x00020000")
        A(f"s_lshl_b32 s58, s{sGW}, 8")
        A(f"buffer_store_dword v{T0}, v{T1}, s[60:63], s58 offen")
    if opt.get('hdbg'):
        A("s_load_dwordx2 s[52:53], s[0:1], 40")
        A("s_waitcnt vmcnt(0) lgkmcnt(0)")
        stamp(A, opt, 15, True)
        A("s_waitcnt lgkmcnt(0)")
        A("s_and_b32 s53, s53, 0xffff")
        A("s_mov_b32 s54, 64")
        A("s_mov_b32 s55, 0x00020000")
        A(f"v_mov_b32 v{U0}, 0")
        for k, sl in enumerate([1, 8, 9, 2, 3, 13, 15]):
            A(f"s_sub_u32 s58, s{64+2*sl}, s{sTOK}")
            A("s_add_u32 s58, s58, 1000")
            A(f"v_writelane_b32 v{U0}, s58, {k+1}")
            A("s_sub_u32 s58, 100000, s58")
            A(f"v_writelane_b32 v{U0}, s58, {k+9}")
        A("s_mov_b64 exec, 0xfefe")
        A(f"buffer_atomic_umax v{U0}, v{T1}, s[52:55], 0 offen sc1")
    else:
        stamp_dump(A, opt, 0, sWAVE, U0)
    A.label("L_end")
    A("s_endpgm")
    if opt['cpf']:
        A.raw(f".org {name} + {opt['org']}, 0")
    return name, 256+NA+12, 256, LDS1

HEADER = """; Kernarg layout for this problem (56 bytes, ptrs only, base s[0:1]):
"""

def main():
    opt = dict(rd_gaps=[g for g in range(0, 44) if g % 4 != 3][:32],
               q0_dma=[3, 11, 19, 27, 35, 43],
               q1_dma=[3, 7, 19, 23, 27, 31, 35, 39, 43, 46, 49, 51, 53],
               q1f_dma=[1, 3, 5, 7, 10, 13, 16, 19, 23, 27, 31, 35, 39, 43, 45, 47, 49, 51, 53],
               q1j_dma=[0, 2, 4, 6, 9, 11, 13, 15, 18, 20, 22, 24, 28, 30, 32, 34, 37, 40, 43, 46, 49, 51, 53],
               epx=None, pf_dist=5, jit=1, h_pre=4, fw=1, fx=1, f2=1, ep=None, pol_w=' nt', pol_x='', pol_pw='', epi_n=2, epi_plain=5, sentg=[19, 23, 27, 31, 35, 39, 43, 47], w2a=[19, 23, 27, 31, 35, 39, 43, 47], w2b=[3, 7, 11, 15, 19, 23, 27, 31], xl=6, xld=99, xpf=None, wsoff=0, cpf=3, cpf_n=3, org=36864, w_pre=6, g0=1, late_ds=2, wage=8, fwarm=1, lgw=1, xwarm=0, xpoll=1, cpf0=0, pf2_skip=0, xdelay=0, xsleep=1, out_pol='', lg2=14, g2_dma=[2, 6, 10, 14], g2_h=[2, 6, 10, 14])
    for a in sys.argv[2:]:
        k, v = a.split("=", 1)
        opt[k] = eval(v)
    A = Asm()
    name, nv, ao, lds = kernel(A, opt)
    out = HEADER
    out += f"; @launch grid=(256,1,1) block=(256,1,1) lds={lds}\n"
    out += '.amdgcn_target "amdgcn-amd-amdhsa--gfx950"\n'
    out += A.text()
    out += '.section .rodata,"a"\n'
    out += f""".p2align 6
.amdhsa_kernel {name}
  .amdhsa_next_free_vgpr {nv}
  .amdhsa_next_free_sgpr {100 if opt.get('stamps') else 64}
  .amdhsa_accum_offset {ao}
  .amdhsa_group_segment_fixed_size 0
  .amdhsa_kernarg_size 56
  .amdhsa_user_sgpr_count 2
  .amdhsa_user_sgpr_kernarg_segment_ptr 1
  .amdhsa_system_sgpr_workgroup_id_x 1
.end_amdhsa_kernel
"""
    open(sys.argv[1], "w").write(out)

main()
```
